```python
import torch

def _softmax(x, axis=-1):
    return torch.softmax(x, dim=axis)

def _gelu(x):
    return torch.nn.functional.gelu(x, approximate='tanh')

def _silu(x):
    return torch.nn.functional.silu(x)

def _sigmoid(x):
    return torch.sigmoid(x)

def _layernorm(x, axis=-1, eps=1e-05):
    m = x.mean(dim=axis, keepdim=True)
    v = x.var(dim=axis, keepdim=True, unbiased=False)
    return (x - m) / torch.sqrt(v + eps)

def _scatter_add(tgt, idx, src, axis=0):
    return tgt.clone().index_add_(axis, idx, src)

def _segment_sum(src, seg, n):
    out = torch.zeros((n,) + src.shape[1:], dtype=src.dtype)
    return out.index_add_(0, seg, src)

def _pad(x, pw):
    flat = tuple((v for pair in reversed(pw) for v in pair))
    return torch.nn.functional.pad(x, flat)
kernel_name = 'gated_mix__memory_aug_recurrent_mem_tr__moe_arch_mod__prompt'

def setup_inputs():

    _w = lambda a: (lambda t: t.to(torch.bfloat16) if t.is_floating_point() else t)(torch.as_tensor(a))

    def _A_setup():
        B, S, Dm = (1, 2048, 576)
        H, Dh = (32, 128)
        M, seg = (8, 32)
        seg = min(seg, S)
        S = S // seg * seg
        return {'x': _w((lambda *s: torch.randn(*s, dtype=torch.bfloat16) * 0.05)(B, S, Dm)), 'mem0': _w((lambda *s: torch.randn(*s, dtype=torch.bfloat16) * 0.8)(B, M, Dm)), 'Wq': _w((lambda *s: torch.randn(*s, dtype=torch.bfloat16) * 3.2)(Dm, H, Dh) * Dm ** (-0.5)), 'Wk': _w((lambda *s: torch.randn(*s, dtype=torch.bfloat16) * 3.2)(Dm, H, Dh) * Dm ** (-0.5)), 'Wv': _w((lambda *s: torch.randn(*s, dtype=torch.bfloat16) * 0.8)(Dm, H, Dh) * Dm ** (-0.5)), 'Wo': _w((lambda *s: torch.randn(*s, dtype=torch.bfloat16) * 0.8)(H, Dh, Dm) * (H * Dh) ** (-0.5)), 'seg_len': seg}
    _A_in = _A_setup()

    def _B_setup():
        B, S, D, F, C = (1, 2048, 576, 4608, 8)
        return {'x': _w((lambda *s: torch.randn(*s, dtype=torch.bfloat16) * 0.05)(B, S, D)), 'w_r': _w((lambda *s: torch.randn(*s, dtype=torch.bfloat16) * 3.2)(D)), 'w_gate': _w((lambda *s: torch.randn(*s, dtype=torch.bfloat16) * 0.1)(D, F)), 'w_up': _w((lambda *s: torch.randn(*s, dtype=torch.bfloat16) * 0.1)(D, F)), 'w_down': _w((lambda *s: torch.randn(*s, dtype=torch.bfloat16) * 0.1)(F, D))}
    _B_in = _B_setup()
    return {'A_x': _A_in['x'], 'A_mem0': _A_in['mem0'], 'A_Wq': _A_in['Wq'], 'A_Wk': _A_in['Wk'], 'A_Wv': _A_in['Wv'], 'A_Wo': _A_in['Wo'], 'A_seg_len': _A_in['seg_len'], 'B_x': _B_in['x'], 'B_w_r': _B_in['w_r'], 'B_w_gate': _B_in['w_gate'], 'B_w_up': _B_in['w_up'], 'B_w_down': _B_in['w_down'], 'gate_w': _w((lambda *s: torch.randn(*s, dtype=torch.bfloat16) * 0.05)(576) * 16.0)}

def reference(A_x, A_mem0, A_Wq, A_Wk, A_Wv, A_Wo, A_seg_len, B_x, B_w_r, B_w_gate, B_w_up, B_w_down, gate_w):

    def _A_ref(x, mem0, Wq, Wk, Wv, Wo, seg_len):
        B, S, Dm = x.shape
        H, Dh = (Wq.shape[1], Wq.shape[2])
        M = mem0.shape[1]
        scale = Dh ** (-0.5)
        n_seg = S // seg_len
        L = M + seg_len
        idx = torch.arange(L)
        mask = (idx[:, None] < M) | (idx[:, None] >= idx[None, :])
        mem = mem0
        outs = []
        for s in range(n_seg):
            xs = x[:, s * seg_len:(s + 1) * seg_len, :].clone()
            h = torch.concatenate([mem, xs], axis=1)
            q = torch.einsum('btd,dhe->bhte', h, Wq)
            k = torch.einsum('btd,dhe->bhte', h, Wk)
            v = torch.einsum('btd,dhe->bhte', h, Wv)
            scores = torch.einsum('bhqe,bhke->bhqk', q, k) * scale
            scores = torch.where(mask[None, None], scores, -1000000000.0)
            p = _softmax(scores, axis=-1)
            o = torch.einsum('bhqk,bhke->bhqe', p, v)
            o = torch.einsum('bhte,hed->btd', o, Wo)
            mem = o[:, :M, :].clone()
            outs.append(o[:, M:, :])
        return torch.concatenate(outs, axis=1)

    def _B_ref(x, w_r, w_gate, w_up, w_down):
        B, S, D = x.shape
        C = 8
        r = x @ w_r
        idx = torch.argsort(-r, axis=-1)[:, :C]
        idx_e = (lambda x, n, axis: torch.repeat_interleave(x, n, dim=axis))(idx.reshape(B, C, 1), D, axis=2)
        x_sel = (lambda x, i, axis: torch.take_along_dim(x, i, dim=axis))(x, idx_e, axis=1)
        g = _silu(x_sel @ w_gate)
        u = x_sel @ w_up
        y = g * u @ w_down
        r_sel = _sigmoid((lambda x, i, axis: torch.take_along_dim(x, i, dim=axis))(r, idx, axis=1))
        y = y * r_sel.reshape(B, C, 1)
        b_off = (torch.arange(B) * S).reshape(B, 1)
        flat_idx = (idx + b_off).reshape(B * C)
        zero = (x * 0.0).reshape(B * S, D)
        upd = _scatter_add(zero, flat_idx, y.reshape(B * C, D), axis=0)
        return x + upd.reshape(B, S, D)
    x = A_x
    g = _sigmoid((x * gate_w).sum(-1, keepdims=True))
    a = _A_ref(x, A_mem0, A_Wq, A_Wk, A_Wv, A_Wo, A_seg_len)
    b = _B_ref(x, B_w_r, B_w_gate, B_w_up, B_w_down)
    return g * a + (1 - g) * b
```

```python
import re

REG_RE = re.compile(r'(?<![\w.])([vas])(?:\[(\d+):(\d+)\]|(\d+))(?![\w])')

def regs_of(tok):
    out = []
    t = tok.strip()
    if t in ('vcc',): return [('s', 'vcc')]
    if t in ('vcc_lo', 'vcc_hi'): return [('s', 'vcc')]
    if t in ('exec', 'exec_lo', 'exec_hi'): return [('s', 'exec')]
    if t == 'm0': return [('s', 'm0')]
    for m in REG_RE.finditer(t):
        k = m.group(1)
        if m.group(4) is not None: out.append((k, int(m.group(4))))
        else: out += [(k, i) for i in range(int(m.group(2)), int(m.group(3)) + 1)]
    return out

TRANS = ('v_exp_f32', 'v_log_f32', 'v_rcp_f32', 'v_rsq_f32', 'v_sqrt_f32', 'v_sin_f32', 'v_cos_f32', 'v_rcp_iflag_f32')

class Ins:
    __slots__ = ('text', 'op', 'dst', 'src', 'cls', 'dpp', 'srcC', 'srcAB', 'wide_store', 'lds_dma', 't', 'nocheck')
    def __init__(self, text, nocheck=False):
        self.text = text; self.nocheck = nocheck
        t = text.split(';')[0].strip()
        parts = t.split(None, 1)
        op = parts[0]; self.op = op
        rest = parts[1] if len(parts) > 1 else ''
        rest_nm = re.sub(r'\b(quad_perm|op_sel|op_sel_hi|neg_lo|neg_hi):\[[^\]]*\]', lambda m: m.group(1), rest)
        ops = [o.strip() for o in rest_nm.split(',')] if rest else []
        mods = ''
        if ops:
            sp = ops[-1].split(None, 1)
            if len(sp) > 1 and not ops[-1].startswith('hwreg') :
                ops[-1] = sp[0]; mods = sp[1]
        self.dpp = ('_dpp' in op) or ('row_' in mods) or ('quad_perm' in rest)
        self.srcC = []; self.srcAB = []; self.wide_store = []; self.lds_dma = False
        R = [regs_of(o) for o in ops]
        flat = lambda l: [x for y in l for x in y]
        dst = []; src = []
        if op.startswith('v_mfma'):
            self.cls = 'mfma'; dst = R[0]; self.srcAB = R[1] + R[2]; self.srcC = R[3]; src = flat(R[1:])
        elif op.startswith('v_smfmac'):
            self.cls = 'smfmac'; dst = R[0]; self.srcAB = R[1] + R[2] + R[3]; self.srcC = R[0]; src = flat(R)
        elif op.startswith('v_'):
            self.cls = 'valu'
            if op.startswith('v_cmpx'):
                dst = R[0] + [('s', 'exec')]; src = flat(R[1:])
            elif op.startswith('v_permlane') and 'swap' in op:
                dst = flat(R); src = flat(R)
            elif op.startswith(('v_add_co', 'v_sub_co', 'v_addc_co', 'v_subb_co', 'v_subrev_co')):
                dst = R[0] + R[1]; src = flat(R[2:])
            elif op.startswith(('v_fmac', 'v_pk_fmac', 'v_dot2c', 'v_writelane')) or self.dpp or 'd16' in op:
                dst = R[0]; src = flat(R)
            elif op == 'v_nop':
                pass
            else:
                dst = R[0]; src = flat(R[1:])
        elif op.startswith(('buffer_load', 'global_load')):
            self.cls = 'vmem'
            if re.search(r'\blds\b', mods) or '_lds_' in op:
                self.lds_dma = True; src = flat(R) + [('s', 'm0')]
            else:
                dst = R[0]; src = flat(R[1:])
                if 'd16' in op: src = flat(R)
        elif op.startswith(('buffer_store', 'global_store')):
            self.cls = 'vmem'; src = flat(R)
            if 'x3' in op or 'x4' in op:
                self.wide_store = R[0] if op.startswith('buffer') else R[1]
        elif op.startswith(('buffer_atomic', 'global_atomic')):
            self.cls = 'vmem'
            if 'sc0' in mods:
                dst = R[0]; src = flat(R) if op.startswith('buffer') else flat(R[1:])
            else: src = flat(R)
        elif op.startswith(('buffer_inv', 'buffer_wbl2')):
            self.cls = 'vmem'
        elif op.startswith('ds_'):
            self.cls = 'ds'
            if op.startswith(('ds_read', 'ds_bpermute', 'ds_permute', 'ds_swizzle')) or '_rtn' in op:
                dst = R[0]; src = flat(R[1:])
            else: src = flat(R)
        elif op.startswith(('s_load', 's_memtime', 's_memrealtime', 's_buffer_load')):
            self.cls = 'smem'; dst = R[0]; src = flat(R[1:])
        elif op.startswith('s_'):
            self.cls = 'salu'
            if op.startswith(('s_cmp', 's_bitcmp', 's_cbranch', 's_branch', 's_nop', 's_waitcnt', 's_barrier', 's_endpgm', 's_sleep', 's_setprio')):
                src = flat(R)
                if 'vcc' in op: src.append(('s', 'vcc'))
                if 'exec' in op: src.append(('s', 'exec'))
            else:
                dst = R[0] if R else []; src = flat(R[1:])
                if 'saveexec' in op: dst = dst + [('s', 'exec')]
        else:
            raise ValueError('unknown op ' + text)
        self.dst = dst; self.src = src

class K:
    def __init__(self):
        self.out = []
        self.reset()
        self.nops_inserted = 0
        self.log = []
        self.t_est = 0
    def reset(self):
        self.vm = []
        self.lg = []
        self.hist = []
        self.state = 0
        self.time = 0
        self.mfma_free = 0
        self.valu_free = 0
    def raw(self, s): self.out.append(s)
    def label(self, name): self.out.append(name + ':')
    def comment(self, s): self.out.append('  ; ' + s)
    def _emit(self, ins, states=1):
        t = self.time
        if ins.cls in ('mfma', 'smfmac'):
            t = max(t, self.mfma_free, self.valu_free)
            self.mfma_free = t + 16
            self.valu_free = t + (12 if ins.cls == 'smfmac' else 8)
        elif ins.cls == 'valu':
            t = max(t, self.valu_free)
        ins.t = t
        self.hist.append((ins, self.state, t))
        if len(self.hist) > 64: self.hist.pop(0)
        self.state += states
        self.time = t + 4 * states
        self.out.append('  ' + ins.text)
    def nop(self, n):
        while n > 0:
            k = min(n, 16)
            self._emit(Ins(f's_nop {k-1}'), k); n -= k
    def wait(self, vm=None, lg=None):
        parts = []
        if vm is not None:
            parts.append(f'vmcnt({vm})'); self.vm = self.vm[len(self.vm) - vm:] if vm and vm < len(self.vm) else ([] if vm == 0 else self.vm)
        if lg is not None:
            parts.append(f'lgkmcnt({lg})'); self.lg = self.lg[len(self.lg) - lg:] if lg and lg < len(self.lg) else ([] if lg == 0 else self.lg)
        self._emit(Ins('s_waitcnt ' + ' '.join(parts)))
    def _issue_time(self, ins):
        t = self.time
        if ins.cls in ('mfma', 'smfmac'): t = max(t, self.mfma_free, self.valu_free)
        elif ins.cls == 'valu': t = max(t, self.valu_free)
        return t
    def I(self, text, nocheck=False):
        for line in text.strip().split('\n'):
            line = line.strip()
            if not line or line.startswith(';'): continue
            if line.endswith(':'): self.label(line[:-1]); continue
            self._one(line, nocheck)
    def _one(self, text, nocheck):
        ins = Ins(text, nocheck)
        if ins.op == 's_nop':
            self._emit(ins, int(text.split()[1]) + 1); return
        if ins.op == 's_waitcnt':
            vm = re.search(r'vmcnt\((\d+)\)', text); lg = re.search(r'lgkmcnt\((\d+)\)', text)
            self.wait(int(vm.group(1)) if vm else None, int(lg.group(1)) if lg else None); return
        touched = set(ins.src) | set(ins.dst)
        if not nocheck:
            need_vm = None
            for i, d in enumerate(self.vm):
                if d & touched: need_vm = len(self.vm) - 1 - i
            need_lg = None
            for i, d in enumerate(self.lg):
                if d & touched: need_lg = len(self.lg) - 1 - i
            if need_lg is not None and any(('smem',) in d for d in self.lg): need_lg = 0
            if need_vm is not None: need_vm = min(need_vm, 63)
            if need_lg is not None: need_lg = min(need_lg, 15)
            if need_vm is not None or need_lg is not None: self.wait(need_vm, need_lg)
        need = 0
        S = set(ins.src); D = set(ins.dst)
        tnow = self._issue_time(ins)
        need_t = 0
        for (p, st, tp) in self.hist:
            dist = self.state - st - 1
            pd = set(p.dst)
            def req(n):
                nonlocal need
                need = max(need, n - dist)
            if p.cls in ('mfma', 'smfmac'):
                hit = False
                if ins.cls in ('mfma', 'smfmac'):
                    if pd & set(ins.srcAB): hit = True
                    c = ins.srcC
                    if pd & set(c) and list(p.dst) != list(c): hit = True
                    if pd & D and list(p.dst) != list(c): hit = True
                elif ins.cls in ('valu', 'vmem', 'ds'):
                    if pd & (S | D): hit = True
                if hit: need_t = max(need_t, tp + 36 - tnow)
                if ins.cls in ('mfma', 'smfmac') and pd & set(ins.srcC) and p.op != ins.op:
                    need_t = max(need_t, tp + 28 - tnow)
                if ins.cls == 'valu' and set(p.srcC) & D: need_t = max(need_t, tp + 16 - tnow)
            if p.cls == 'valu':
                pv = {r for r in pd if r[0] in 'va'}
                ps = {r for r in pd if r[0] == 's'}
                if ins.cls in ('mfma', 'smfmac'):
                    if pv & S: req(2)
                    if ('s', 'exec') in ps: req(4)
                if ins.cls == 'valu':
                    if ins.dpp and pv & S: req(2)
                    if ins.dpp and ('s', 'exec') in ps: req(5)
                    if ins.op.startswith('v_permlane') and pv & S: req(2)
                    if ins.op.startswith('v_permlane') and ('s', 'exec') in ps: req(4)
                    if ins.op.startswith(('v_readlane', 'v_readfirstlane')) and pv & S: req(1)
                    if ins.op.startswith(('v_readlane', 'v_readfirstlane', 'v_writelane')) and ('s', 'exec') in ps: req(4)
                    if p.op.startswith(TRANS) and pv & S and not ins.op.startswith(TRANS): req(1)
                    if p.op.startswith(TRANS) and pv & S and ins.op.startswith(TRANS): req(1)
                    if ps & S:
                        req(4 if ins.op.startswith(('v_readlane', 'v_writelane')) else 2)
                    if 'sdwa' in p.op or 'op_sel' in p.text and not p.op.startswith('v_pk'):
                        if pv & (S | D): req(1)
                if ins.cls == 'vmem' and (ps - {('s', 'exec')}) & S: req(5)
                if ins.cls in ('salu',) and (ps & S) and not ins.op.startswith('s_cbranch'): req(1)
            if p.cls == 'vmem' and p.wide_store and set(p.wide_store) & D:
                req(2 if ins.cls in ('valu', 'mfma', 'smfmac') else 1)
            if p.cls == 'salu' and ('s', 'm0') in pd and ins.lds_dma: req(1)
        if need_t > 0: need = max(need, -(-(need_t + (tnow - self.time)) // 4))
        if need > 0:
            self.nops_inserted += need
            self.log.append((len(self.out), need, text))
            self.nop(need)
        self._emit(ins)
        if ins.cls == 'vmem': self.vm.append(set(ins.dst))
        if ins.cls == 'ds': self.lg.append(set(ins.dst))
        if ins.cls == 'smem': self.lg.append(set(ins.dst) | {('smem',)})
    def text(self): return '\n'.join(self.out) + '\n'

def vr(a, n=1, k='v'):
    return f'{k}{a}' if n == 1 else f'{k}[{a}:{a+n-1}]'
```

```python
from common import *
import numpy as np
def np_f32_bits(x): return int(np.float32(x).view(np.uint32))

L_MA, L_S, L_R5, L_X2, L_W = 0, 8192, 12288, 13312, 16384
vL16, vIDX, vLW, vPST, vPSO, vRST, vLAND, vX1W, vL8, vX2W, vPOIS, vNEG1 = range(12)
RD = 12
ACC = dict(q0=16, q1=20, k0=24, k1=28, v0=64, v1=68)
VX = 32
MA = [40, 44, 48, 52]
WR = [56, 64]
KX = 72
sH, sSTEP, sLW, sT, sEX = 34, 35, 36, 37, 38
sP0, sPU, sPX = 40, 44, 45
sPRU, sPRX = 46, 47
sMC, sMU, sMX = 48, 49, 50
sMRU, sMRX = 51, 52
sU64, sX64 = 53, 54
sKVX, sKVXN, sMHU, sFKVX, sMHX = 55, 56, 57, 58, 59
sMSK = 60
sC = 70
sPSLOT = 71
sVAL = 72
sMCW, sMC8 = 74, 75
sFLG = 76
NSTEP = 63

LDS_CH = ['Q0', 'K1', 'Q2', 'Q4', 'K5', 'Q7', 'Oo', 'O11', 'O31']

def weight_map():
    names = [f'{m}{n}' for n in range(9) for m in 'QKV'] + [f'O{i}{kp}' for i in range(4) for kp in range(2)] + ['Oo']
    regch = [n for n in names if n not in LDS_CH]
    assert len(regch) == 27
    dest = {}
    for i, n in enumerate(regch):
        if i < 16: dest[n] = [('a', 16*i), ('a', 16*i + 8)]
        else: dest[n] = [('v', 80 + 16*(i-16)), ('v', 88 + 16*(i-16))]
    return regch, dest
REGCH, WDEST = weight_map()

def W(name, u):
    kind, base = WDEST[name][u]; return vr(base, 8, kind)
def lds_frag_reads(name, u, reg):
    slot = LDS_CH.index(name)
    return [f'ds_read_b128 {vr(reg + 4*hf, 4)}, v{vLW} offset:{slot*4096 + u*2048 + hf*1024}' for hf in range(2)]
def SM(acc, A, B): return f'v_smfmac_f32_16x16x64_bf16 {vr(acc,4)}, {vr(A,4)}, {B}, v{vIDX}'

def chain_prologue(k, cfg):
    k.comment('==== chain prologue')
    k.I(f's_mov_b32 s{sH}, s{sSLOT}')
    load_srds(k, [(S_A, 'Wq'), (S_B, 'Wk'), (S_C, 'Wv'), (S_D, 'mem0')])
    lane, c, g, t0, t1, t2 = 79, 78, 77, 76, 75, 74
    k.I(f'''
    v_mov_b32 v{lane}, v0
    v_and_b32 v{c}, 15, v{lane}
    v_lshrrev_b32 v{g}, 4, v{lane}
    v_lshlrev_b32 v{vL16}, 4, v{lane}
    v_lshlrev_b32 v{vL8}, 3, v{lane}
    v_mov_b32 v{vNEG1}, -1
    v_mov_b32 v{vIDX}, 0x4444
    v_mov_b32 v{t0}, 0xeeee
    v_and_b32 v{t1}, 2, v{lane}
    v_cmp_ne_u32 vcc, 0, v{t1}
    v_cndmask_b32 v{vIDX}, v{vIDX}, v{t0}, vcc
    s_mul_i32 s{sLW}, s{sW}, 36864
    s_add_u32 s{sLW}, s{sLW}, {L_W}
    v_add_u32 v{vLW}, s{sLW}, v{vL16}
    v_lshrrev_b32 v{t0}, 3, v{c}
    v_lshl_add_u32 v{t0}, v{t0}, 2, v{g}
    v_lshlrev_b32 v{t0}, 11, v{t0}
    v_and_b32 v{t1}, 7, v{c}
    v_lshl_add_u32 v{vPST}, v{t1}, 3, v{t0}
    s_lshl_b32 s{sT}, s{sW}, 14
    s_lshl_b32 s33, s{sH}, 6
    s_add_u32 s{sT}, s{sT}, s33
    v_add_u32 v{vPST}, s{sT}, v{vPST}
    v_and_b32 v{t0}, 8, v{c}
    v_and_b32 v{t1}, 3, v{c}
    v_lshl_add_u32 v{t0}, v{t1}, 1, v{t0}
    v_bfe_u32 v{t1}, v{c}, 2, 1
    v_add_u32 v{t0}, v{t0}, v{t1}
    v_lshlrev_b32 v{t0}, 2, v{t0}
    v_lshl_add_u32 v{vPSO}, v{g}, 11, v{t0}
    s_lshl_b32 s{sT}, s{sW}, 13
    s_add_u32 s{sT}, s{sT}, s33
    s_add_u32 s{sT}, s{sT}, {128*2048}
    v_add_u32 v{vPSO}, s{sT}, v{vPSO}
    v_and_b32 v{t0}, 1, v{c}
    v_lshl_add_u32 v{t0}, v{t0}, 1, v{g}
    v_lshlrev_b32 v{t0}, 4, v{t0}
    v_lshrrev_b32 v{t1}, 1, v{c}
    v_lshl_add_u32 v{vRST}, v{t1}, 3, v{t0}
    v_and_b32 v{t0}, 0x2c, v{lane}
    v_mov_b32 v{t1}, {OOB:#x}
    v_cmp_eq_u32 vcc, 0, v{t0}
    v_cndmask_b32 v{vRST}, v{t1}, v{vRST}, vcc
    v_and_b32 v{t0}, 1, v{lane}
    v_mul_u32_u24 v{t0}, 60, v{t0}
    v_lshrrev_b32 v{t1}, 1, v{lane}
    v_lshl_add_u32 v{vPOIS}, v{t1}, 6, v{t0}
    ; X1 write: c*32 + g*8
    v_lshlrev_b32 v{t0}, 5, v{c}
    v_lshl_add_u32 v{vX1W}, v{g}, 3, v{t0}
    v_mov_b32 v{t1}, {LDS_OOB:#x}
    v_and_b32 v{t0}, 13, v{c}
    v_and_b32 v{t2}, 1, v{g}
    v_lshl_add_u32 v{t0}, v{t2}, 1, v{t0}
    v_lshrrev_b32 v{t2}, 1, v{g}
    v_lshl_add_u32 v{t0}, v{t2}, 4, v{t0}
    v_lshlrev_b32 v{vX2W}, 4, v{t0}
    v_and_b32 v{t0}, 2, v{c}
    v_cmp_ne_u32 vcc, 0, v{t0}
    v_cndmask_b32 v{vX2W}, v{t1}, v{vX2W}, vcc
    s_lshl_b32 s{sU64}, s{sW}, 5
    s_add_u32 s{sU64}, s{sU64}, s{sH}
    s_lshl_b32 s{sU64}, s{sU64}, 6
    s_lshr_b32 s{sX64}, s{sH}, 1
    s_add_u32 s{sX64}, s{sX64}, 128
    s_lshl_b32 s{sX64}, s{sX64}, 6
    s_and_b32 s{sEX}, s{sH}, 1
    s_mov_b32 s{sC}, {np_f32_bits(128**-0.5 * 1.4426950408889634):#x}
    ''')
    set_mask(k, sMSK, lambda l: ((l & 15) >> 2) & 1)
    for n in range(4):
        set_mask(k, sMSK + 2 + 2*n, lambda l: (l & 15) < 8 and n == 2*(l & 1) + ((l >> 1) & 1))
    k.I(f'''
    v_mul_u32_u24 v{t0}, 1152, v{g}
    v_lshrrev_b32 v{t1}, 1, v{c}
    v_lshl_add_u32 v{t0}, v{t1}, 4, v{t0}
    v_and_b32 v{t1}, 1, v{c}
    v_lshl_add_u32 v{t0}, v{t1}, 2, v{t0}
    ''')
    for (su, r) in ((sU64, RD), (sX64, RD + 2)):
        k.I(f'''
        s_bfe_u32 s{sT}, s{su}, 0x20006
        s_mul_i32 s{sT}, s{sT}, 2304
        s_lshr_b32 s33, s{su}, 8
        s_lshl_b32 s33, s33, 5
        s_add_u32 s{sT}, s{sT}, s33
        buffer_load_dword v{r}, v{t0}, {srd(S_D)}, s{sT} offen
        buffer_load_dword v{r+1}, v{t0}, {srd(S_D)}, s{sT} offen offset:8
        ''')
    for r in range(RD, RD + 4): k.I(f'v_min_u32 v{r}, -2, v{r}')
    ws = srd(S_WS)
    for (su, r) in ((sU64, RD), (sX64, RD + 2)):
        k.I(f's_add_u32 s{sT}, s{su}, {WS_M}')
        k.I(f'buffer_store_dwordx2 {vr(r,2)}, v{vRST}, {ws}, s{sT} offen sc1')
        for sl in (1, 2):
            k.I(f's_add_u32 s{sT}, s{sT}, {M_SLOT}')
            k.I(f'buffer_store_dword v{vNEG1}, v{vRST}, {ws}, s{sT} offen sc1')
        k.I(f's_lshl_b32 s{sT}, s{su}, 5')
        for sl in (0, 1):
            k.I(f'buffer_store_dword v{vNEG1}, v{vPOIS}, {ws}, s{sT} offen sc1')
            if sl == 0: k.I(f's_add_u32 s{sT}, s{sT}, {P_SLOT}')
    vD, vDO, vDOo, vTN, vTO, vTOo = 40, 41, 42, 43, 44, 45
    k.I(f'''
    v_lshrrev_b32 v{t0}, 2, v{lane}
    v_and_b32 v{t1}, 3, v{lane}
    v_lshlrev_b32 v{t1}, 4, v{t1}
    v_lshl_add_u32 v{vD}, v{t0}, 13, v{t1}
    s_lshl_b32 s{sT}, s{sH}, 8
    s_lshl_b32 s33, s{sW}, 6
    s_add_u32 s{sT}, s{sT}, s33
    v_add_u32 v{vD}, s{sT}, v{vD}
    v_mul_u32_u24 v{vDO}, 1152, v{t0}
    v_add_u32 v{vDO}, v{vDO}, v{t1}
    s_mul_i32 s{sT}, s{sH}, 147456
    s_add_u32 s33, s33, s{sT}
    v_add_u32 v{vDO}, s33, v{vDO}
    ; odd: (l>>1)*1152 + (l&1)*16 + h*147456 + 1024 + w*32
    v_lshrrev_b32 v{t0}, 1, v{lane}
    v_mul_u32_u24 v{vDOo}, 1152, v{t0}
    v_and_b32 v{t1}, 1, v{lane}
    v_lshl_add_u32 v{vDOo}, v{t1}, 4, v{vDOo}
    s_lshl_b32 s33, s{sW}, 5
    s_add_u32 s{sT}, s{sT}, s33
    s_add_u32 s{sT}, s{sT}, 1024
    v_add_u32 v{vDOo}, s{sT}, v{vDOo}
    v_lshrrev_b32 v{t0}, 2, v{c}
    v_and_b32 v{t1}, 3, v{c}
    v_lshl_add_u32 v{t2}, v{g}, 3, v{t0}
    v_lshlrev_b32 v{t2}, 6, v{t2}
    v_lshl_add_u32 v{vTN}, v{t1}, 3, v{t2}
    v_add_u32 v{vTN}, s{sLW}, v{vTN}
    v_and_b32 v{t2}, 1, v{g}
    v_lshlrev_b32 v{t2}, 4, v{t2}
    v_lshrrev_b32 v46, 1, v{g}
    v_lshl_add_u32 v{t2}, v46, 3, v{t2}
    v_lshrrev_b32 v46, 1, v{t0}
    v_lshl_add_u32 v{t2}, v46, 2, v{t2}
    v_and_b32 v46, 1, v{t0}
    v_add_u32 v{t2}, v{t2}, v46
    v_lshlrev_b32 v46, 6, v{t2}
    v_lshl_add_u32 v{vTO}, v{t1}, 4, v46
    v_add_u32 v{vTO}, s{sLW}, v{vTO}
    v_lshlrev_b32 v46, 5, v{t2}
    v_lshl_add_u32 v{vTOo}, v{t1}, 3, v46
    v_add_u32 v{vTOo}, s{sLW}, v{vTOo}
    s_lshl_b32 s39, s{sW}, 20
    ''')
    S_WO = S_D
    load_srds(k, [(S_WO, 'Wo')])
    chunks = []
    for name in REGCH + LDS_CH:
        dest = WDEST.get(name)
        if name[0] in 'QKV':
            n = int(name[1]); sr = dict(Q=S_A, K=S_B, V=S_C)[name[0]]
            if n < 8: so = lambda i, n=n: f's_xor_b32 s{sT}, s39, {((n>>1) << 20) | ((n&1) << 19) | (i << 17):#x}'
            else: so = lambda i: f's_mov_b32 s{sT}, {(8 << 19) | (i << 17):#x}'
            chunks.append(dict(srd=sr, vdma=f'v{vD}', soff=so, vtr=f'v{vTN}', imm=lambda u, hf, sub: (32*hf + 4*sub)*64 + 32*u, dest=dest))
        elif name == 'Oo':
            chunks.append(dict(srd=S_WO, vdma=f'v{vDOo}', soff=lambda i: f's_mov_b32 s{sT}, {32*i*1152}', vtr=f'v{vTOo}',
                               imm=lambda u, hf, sub: (64*u + 32*hf + 2*sub)*32, dest=dest))
        else:
            pi, kp = int(name[1]), int(name[2])
            chunks.append(dict(srd=S_WO, vdma=f'v{vDO}', soff=lambda i, pi=pi, kp=kp: f's_mov_b32 s{sT}, {(64*kp + 16*i)*1152 + pi*256}',
                               vtr=f'v{vTO}', imm=lambda u, hf, sub: (32*hf + 2*sub)*64 + 8*u, dest=dest))
    def arrive():
        k.I('s_barrier')
        k.I(f'''
        s_lshl_b32 s{sT}, s{sFOREIGN}, 16
        s_add_u32 s{sT}, s{sT}, 1
        v_mov_b32 v16, s{sT}
        s_lshl_b32 s{sT}, s{sW}, 6
        v_add_u32 v17, s{sT}, v{lane}
        v_lshlrev_b32 v17, 8, v17
        ''')
        k.raw(f'  buffer_atomic_add v16, v17, {srd(S_DBG)}, 0 offen offset:{D_CHAIN}')
    load_chunks(k, chunks, sLW, sT, vLW, 56, after_first=arrive)
    stamp(k, cfg, 'loaded')
    set_mask(k, sVAL, lambda l: l & 2)
    k.I(f'''
    s_mov_b32 s{S_C}, s{S_WS}
    s_mov_b32 s{S_C+1}, s{S_WS+1}
    s_cmp_eq_u32 s{sEX}, 0
    s_cselect_b32 s{S_C+2}, {WS_SIZE:#x}, 0
    s_mov_b32 s{S_C+3}, 0x20000
    ''')
    spin_dbg(k, 'L_c_init', D_INIT, f's_cmp_ge_u32 s33, {N_INIT}')
    spin_dbg(k, 'L_c_bar', D_CHAIN, f's_and_b32 s{sT}, s33, 0xffff\ns_cmp_ge_u32 s{sT}, 32')
    k.I(f's_lshr_b32 s{sFOREIGN}, s33, 16')
    k.I(f'''
    s_mov_b32 s{sSTEP}, 0
    s_mov_b32 s{sPSLOT}, 0
    s_mov_b32 s{sMC}, {WS_M}
    s_lshl_b32 s{sT}, s{sW}, 11
    s_add_u32 s{sMCW}, s{sT}, {WS_M}
    s_mov_b32 s{sMC8}, {WS_M + 8192}
    s_lshl_b32 s{sKVX}, s{sH}, 20
    s_lshl_b32 s{sT}, s{sW}, 12
    s_add_u32 s{sKVX}, s{sKVX}, s{sT}
    s_add_u32 s{sKVX}, s{sKVX}, {WS_KVX:#x}
    s_lshl_b32 s{sFKVX}, s{sH}, 8
    s_add_u32 s{sFKVX}, s{sFKVX}, {F_KVX:#x}
    s_add_u32 s{sMHU}, s{sU64}, {WS_MH:#x}
    s_add_u32 s{sMHX}, s{sX64}, {WS_MH:#x}
    s_lshl_b32 s{sPRU}, s{sU64}, 5
    s_add_u32 s{sPRU}, s{sPRU}, {P_SLOT}
    s_lshl_b32 s{sPRX}, s{sX64}, 5
    s_add_u32 s{sPRX}, s{sPRX}, {P_SLOT}
    s_add_u32 s{sMRU}, s{sU64}, {WS_M + 2*M_SLOT}
    s_add_u32 s{sMRX}, s{sX64}, {WS_M + 2*M_SLOT}
    ''')
    k.label('L_c_kv0')
    k.I(f'''
    buffer_load_dword v16, off, {ws}, s{sFKVX} sc1
    s_sub_u32 s{sBUD}, s{sBUD}, 1
    s_cbranch_scc1 L_exit
    v_cmp_eq_u32 vcc, 0, v16
    s_cbranch_vccnz L_c_kv0
    ''')
    k.reset()
    k.I(f's_add_u32 s{sFKVX}, s{sFKVX}, 4')
    k.I(f's_mov_b32 s{sFLG}, 0')
    for u in range(2):
        for s in lds_frag_reads('Q0', u, WR[u]): k.I(s)
    for a in range(16, 32, 2): k.I(f'v_mov_b64 {vr(a,2)}, 0')
    stamp(k, cfg, 8)
    if cfg.get('stamps'):
        k.raw('  s_memrealtime s[100:101]')
        for i in range(8): k.raw(f'  s_mov_b32 s{12+i}, 0')
    k.I(f's_cmp_lg_u32 s{sFOREIGN}, 0')
    k.I('s_cbranch_scc1 L_c_slow')
    for md in ('f', 's'):
        if md == 's': k.label('L_c_slow')
        for w in range(3):
            k.I(f's_cmp_eq_u32 s{sW}, {w}'); k.I(f's_cbranch_scc1 L_c{md}{w}_h2')
        k.I(f's_branch L_c{md}3_h2')

DEFMARKS = ['A', 'B', 'C', 'D', 'E', 'F', 'hop1', 'hop2']
def stamp(k, cfg, i):
    if not cfg.get('stamps'): return
    if i == 'loaded': k.raw('  s_memtime s[26:27]'); return
    if isinstance(i, str):
        m = cfg.get('marks', DEFMARKS)
        if i not in m: return
        i = m.index(i)
    k.raw(f'  s_memtime s[{80+2*i}:{81+2*i}]')

def chain_loop(k, P, st, cfg, w):
    ws = srd(S_WS)
    d1, d2 = cfg['d1'][w], cfg['d2'][w]
    EXW = (w == 0)
    k.reset()
    k.label(P + '_loop')
    if cfg.get('stamps'):
        k.raw('  s_memtime s[78:79]\n  s_waitcnt lgkmcnt(0)\n  s_cmp_lt_u32 s%d, 2\n  s_cbranch_scc1 %s_noacc' % (sSTEP, P))
        for i in range(8):
            k.raw(f'  s_sub_u32 s33, s{82+2*i if i < 7 else 78}, s{80+2*i}\n  s_add_u32 s{12+i}, s{12+i}, s33')
        k.label(P + '_noacc')
    stamp(k, cfg, 'A')
    def B(name, u): return vr(WR[u], 8) if name in LDS_CH else W(name, u)
    order = [(0, MA[0]), (1, MA[1]), (8, MA[2]), (2, MA[3]), (3, MA[0]), (4, MA[1]), (5, MA[3]), (6, MA[0]), (7, MA[1])]
    mf = []
    for n, a in order:
        for m in 'QK':
            for u in range(2): mf.append(SM(ACC[m.lower() + str(u)], a, B(f'{m}{n}', u)))
    fill = {}
    def add(pos, *ins): fill.setdefault(pos, []).extend(ins)
    def moff(n): return L_MA + ((w ^ (n >> 1))*2 + (n & 1))*1024
    def mread(n, reg): return f'ds_read_b128 {vr(reg,4)}, v{vL16} offset:{moff(n)}'
    def wreads(nm, ps, buf=WR):
        r = lds_frag_reads(nm, 0, buf[0]) + lds_frag_reads(nm, 1, buf[1])
        for p, x in zip(ps, r): add(p, x)
    pb = cfg.get('pb', 6)
    k.I(f'ds_write_b128 v{vL16}, {vr(MA[0],4)} offset:{moff(0)}')
    add(0, f'ds_write_b128 v{vL16}, {vr(MA[1],4)} offset:{moff(1)}')
    wreads('K1', [1, 1, 2, 2])
    add(pb, lambda: k.wait(lg=0), 's_barrier', mread(2, MA[3]))
    wreads('Q2', [7, 7, 8, 8]); add(9, mread(3, MA[0])); add(10, mread(4, MA[1]))
    wreads('Q4', [12, 13, 14, 15]); add(16, mread(5, MA[3]))
    wreads('K5', [20, 20, 21, 21]); add(22, mread(6, MA[0])); add(24, mread(7, MA[1]))
    wreads('Q7', [26, 26, 27, 27])
    for i, p in enumerate((33, 34, 34, 35)): add(p, f'v_mov_b64 {vr(64+2*i,2)}, 0')
    for i in range(4):
        add(2 + i, f'buffer_load_dwordx4 {vr((KX, KX+4, VX, VX+4)[i],4)}, v{vL16}, {ws}, s{sKVX} offen offset:{1024*i} sc1')
    add(3, f's_cmp_lt_u32 s{sSTEP}, {NSTEP-1}', f'v_lshlrev_b32 v{vLAND}, 2, v{vL16}')
    add(4, f's_cselect_b32 s{sT}, {0 if cfg.get("samekv") else 16384}, 0', f'v_and_b32 v{vLAND}, 0xfff, v{vLAND}')
    add(5, f's_add_u32 s{sKVX}, s{sKVX}, s{sT}', f's_cmp_eq_u32 s{sFLG}, 0')
    add(9, f's_cbranch_scc1 {P}_kvwait', P + '_kvok:')
    if not cfg.get('nowarm'): add(10, f'buffer_load_dword v{vLAND}, v{vLAND}, {ws}, s{sKVX} offen sc1')
    add(11, f's_cmp_lt_u32 s{sSTEP}, {NSTEP-2}', f's_cselect_b32 s{sT}, 4, 0', f's_add_u32 s{sFKVX}, s{sFKVX}, s{sT}')
    add(12, lambda: k.I(f'buffer_load_dword v{vLAND}, off, {ws}, s{sFKVX} sc1', nocheck=True))
    if not cfg.get('noexp'): add(13 + w, f'buffer_store_dwordx2 {vr(RD,2)}, v{vRST}, {ws}, s{sMHU} offen sc1')
    add(17 + w, f'buffer_store_dword v{vNEG1}, v{vPOIS}, {ws}, s{sPRU} offen {st}')
    add(22 + w, f'buffer_store_dword v{vNEG1}, v{vRST}, {ws}, s{sMRU} offen {st}')
    if EXW:
        ex = srd(S_C)
        add(15, f'buffer_store_dwordx2 {vr(RD+2,2)}, v{vRST}, {ex}, s{sMHX} offen sc1')
        add(19, f'buffer_store_dword v{vNEG1}, v{vPOIS}, {ex}, s{sPRX} offen {st}')
        add(24, f'buffer_store_dword v{vNEG1}, v{vRST}, {ex}, s{sMRX} offen {st}')
    sal = [f's_mov_b32 s{sP0}, s{sPSLOT}', f's_add_u32 s{sP0+1}, s{sPSLOT}, 0x10000', f's_add_u32 s{sP0+2}, s{sPSLOT}, 0x20000',
           f's_add_u32 s{sP0+3}, s{sPSLOT}, 0x30000', f's_lshl_b32 s{sPU}, s{sU64}, 5', f's_add_u32 s{sPU}, s{sPU}, s{sPSLOT}',
           f's_mov_b32 s{sPRU}, s{sPU}', f's_add_u32 s{sMRU}, s{sU64}, s{sMC}', f's_add_u32 s{sMHU}, s{sMHU}, {M_SLOT}']
    if EXW: sal += [f's_lshl_b32 s{sPX}, s{sX64}, 5', f's_add_u32 s{sPX}, s{sPX}, s{sPSLOT}', f's_mov_b32 s{sPRX}, s{sPX}',
                    f's_add_u32 s{sMRX}, s{sX64}, s{sMC}', f's_add_u32 s{sMHX}, s{sMHX}, {M_SLOT}']
    sal += [f's_xor_b32 s{sPSLOT}, s{sPSLOT}, {P_SLOT}', f's_add_u32 s{sMC}, s{sMC}, {M_SLOT}', f's_cmp_eq_u32 s{sMC}, {WS_M + 3*M_SLOT}',
            f's_cselect_b32 s{sMC}, {WS_M}, s{sMC}', f's_add_u32 s{sMU}, s{sU64}, s{sMC}', f's_add_u32 s{sMCW}, s{sMC}, {2048*w}',
            f's_add_u32 s{sMC8}, s{sMC}, 8192', f's_mov_b64 vcc, s[{sVAL}:{sVAL+1}]', f's_add_u32 s{sSTEP}, s{sSTEP}, 1']
    if EXW: sal += [f's_add_u32 s{sMX}, s{sX64}, s{sMC}']
    for p in (28, 29, 30, 31, 32):
        add(p, *sal[:3]); sal = sal[3:]
    for p in (33, 34, 35):
        add(p, *sal[:2]); sal = sal[2:]
    for p, nm in ((5, 'A1'), (11, 'A2'), (17, 'A3'), (23, 'A4'), (29, 'A5')):
        add(p, lambda nm=nm: stamp(k, cfg, nm))
    interleave(k, mf, fill)
    stamp(k, cfg, 'B')
    vs = []
    for n, a in ((8, MA[2]), (5, MA[3]), (6, MA[0]), (7, MA[1]), (0, MA[2]), (1, MA[3]), (2, MA[0]), (3, MA[1]), (4, MA[2])):
        for u in range(2): vs.append(SM(ACC[f'v{u}'], a, W(f'V{n}', u)))
    def V(n=1):
        for _ in range(n): k.I(vs.pop(0))
    PK, QK, ONE = 56, 60, 28
    Sw = L_S + 1024*w
    k.I(f'''
    v_add_f32 v16, v16, v18
    v_add_f32 v17, v17, v19
    v_add_f32 v20, v20, v22
    v_add_f32 v21, v21, v23
    v_cvt_pk_bf16_f32 v{PK+1}, v16, v17
    v_cvt_pk_bf16_f32 v{PK+3}, v20, v21
    v_add_f32 v24, v24, v26
    v_add_f32 v25, v25, v27
    v_cvt_pk_bf16_f32 v{PK}, v24, v25
    ds_write_b64 v{vX1W}, {vr(PK,2)} offset:{Sw}
    v_add_f32 v28, v28, v30
    v_add_f32 v29, v29, v31
    v_cvt_pk_bf16_f32 v{PK+2}, v28, v29
    ds_write_b64 v{vX1W}, {vr(PK+2,2)} offset:{Sw+512}
    ds_read_b64_tr_b16 {vr(QK,2)}, v{vL8} offset:{Sw}
    ds_read_b64_tr_b16 {vr(QK+2,2)}, v{vL8} offset:{Sw+512}
    ''')
    stamp(k, cfg, 'B1')
    V()
    for s in sal: k.I(s)
    V(); k.I(mread(0, MA[2])); k.I(f'v_mov_b32 v{ONE}, 0x3f803f80')
    V(); k.I(f'v_mov_b32 v{ONE+1}, 0x3f803f80')
    V(); k.I(mread(1, MA[3]))
    stamp(k, cfg, 'B2')
    k.I(f'v_mfma_f32_16x16x32_bf16 v[16:19], {vr(KX,4)}, {vr(QK,4)}, 0')
    k.I(f'v_mov_b32 v{ONE+2}, 0x3f803f80')
    k.I(f'v_mfma_f32_16x16x32_bf16 v[20:23], {vr(KX+4,4)}, {vr(QK,4)}, 0')
    k.I(f'v_mov_b32 v{ONE+3}, 0x3f803f80')
    k.I(f'v_mfma_f32_16x16x32_bf16 v[24:27], {vr(QK,4)}, {vr(QK,4)}, 0')
    k.I(f'v_mov_b32 v57, 0')
    V()
    stamp(k, cfg, 'B3')
    qp = 'quad_perm:[2,3,0,1] row_mask:0xf bank_mask:0xf'
    for r in range(4):
        k.I(f'v_cndmask_b32_dpp v{16+r}, v{20+r}, v{16+r}, vcc {qp}')
    k.I(f'ds_write_b128 v{vL16}, v[16:19] offset:{Sw}')
    k.I(f'v_cndmask_b32_dpp v24, v25, v24, vcc {qp}')
    k.I(f'ds_write_b32 v{vL16}, v24 offset:{L_R5 + 4*w}')
    stamp(k, cfg, 'B4')
    V(); k.I(mread(2, MA[0]))
    V()
    V(); k.I(mread(3, MA[1]))
    V()
    V(); k.I(mread(4, MA[2]))
    V()
    stamp(k, cfg, 'B5')
    k.wait(lg=3)
    k.I('s_barrier')
    stamp(k, cfg, 'B6')
    k.I(f'ds_read_b128 v[20:23], v{vL16} offset:{L_S + 1024*(w^1)}')
    k.I(f'ds_read_b128 v[72:75], v{vL16} offset:{L_S + 1024*(w^2)}')
    V()
    k.I(f'ds_read_b128 v[76:79], v{vL16} offset:{L_S + 1024*(w^3)}')
    k.I(f'ds_read_b128 v[24:27], v{vL16} offset:{L_R5}')
    V(6)
    assert not vs
    stamp(k, cfg, 'B7')
    for r in range(4): k.I(f'v_add_f32 v{16+r}, v{16+r}, v{20+r}')
    for r in range(2): k.I(f'v_pk_add_f32 {vr(72+2*r,2)}, {vr(72+2*r,2)}, {vr(76+2*r,2)}')
    k.I('v_pk_add_f32 v[24:25], v[24:25], v[26:27]')
    for r in range(2): k.I(f'v_pk_add_f32 {vr(16+2*r,2)}, {vr(16+2*r,2)}, {vr(72+2*r,2)}')
    k.I('v_add_f32 v24, v24, v25')
    stamp(k, cfg, 'C')
    m, t = 58, 59
    WB = [40, 48]
    oo = lds_frag_reads('Oo', 0, WB[0]) + lds_frag_reads('Oo', 1, WB[1])
    k.I(f'''
    v_max3_f32 v{m}, v16, v17, v18
    v_max3_f32 v{m}, v{m}, v19, v24
    v_pk_add_f32 v[64:65], v[64:65], v[66:67]
    v_pk_add_f32 v[68:69], v[68:69], v[70:71]
    v_max_f32_dpp v{m}, v{m}, v{m} {qp}
    v_mov_b32 v{t}, v{m}
    v_cvt_pk_bf16_f32 v66, v64, v65
    v_cvt_pk_bf16_f32 v67, v68, v69
    v_permlane16_swap_b32 v{t}, v{m}
    v_max_f32 v{m}, v{m}, v{t}
    v_mov_b32 v{t}, v{m}
    v_mov_b32 v70, v67
    v_mov_b32 v71, v66
    v_permlane32_swap_b32 v{t}, v{m}
    v_max_f32 v{m}, v{m}, v{t}
    v_mul_f32 v{m}, s{sC}, v{m}
    v_fma_f32 v16, v16, s{sC}, -v{m}
    v_fma_f32 v17, v17, s{sC}, -v{m}
    v_fma_f32 v18, v18, s{sC}, -v{m}
    v_fma_f32 v19, v19, s{sC}, -v{m}
    v_fma_f32 v24, v24, s{sC}, -v{m}
    v_exp_f32 v16, v16
    v_exp_f32 v17, v17
    v_exp_f32 v18, v18
    v_exp_f32 v19, v19
    v_cvt_pk_bf16_f32 v20, v16, v17
    v_cvt_pk_bf16_f32 v21, v18, v19
    v_exp_f32 v24, v24
    v_mov_b32_dpp v22, v20 {qp}
    v_mov_b32_dpp v23, v21 {qp}
    v_mov_b32_dpp v25, v24 {qp}
    v_cvt_pk_bf16_f32 v56, v24, v25
    ''')
    stamp(k, cfg, 'D')
    k.I(f'''
    v_mfma_f32_16x16x32_bf16 v[60:63], {vr(ONE,4)}, v[20:23], 0
    {oo[0]}
    v_mov_b64 v[16:17], 0
    v_mfma_f32_16x16x32_bf16 v[72:75], {vr(VX,4)}, v[20:23], 0
    {oo[1]}
    v_mov_b64 v[18:19], 0
    v_mfma_f32_16x16x16_bf16 v[60:63], {vr(ONE,2)}, v[56:57], v[60:63]
    {oo[2]}
    v_mov_b64 v[24:25], 0
    v_mfma_f32_16x16x32_bf16 v[76:79], {vr(VX+4,4)}, v[20:23], 0
    {oo[3]}
    v_mov_b64 v[26:27], 0
    v_mfma_f32_16x16x16_bf16 v[72:75], v[66:67], v[56:57], v[72:75]
    v_rcp_f32 v58, v60
    v_mfma_f32_16x16x16_bf16 v[76:79], v[70:71], v[56:57], v[76:79]
    v_mov_b64 v[20:21], 0
    v_mov_b64 v[22:23], 0
    v_mov_b64 v[28:29], 0
    v_pk_mul_f32 v[72:73], v[72:73], v[58:59] op_sel_hi:[1,0]
    v_pk_mul_f32 v[74:75], v[74:75], v[58:59] op_sel_hi:[1,0]
    v_cvt_pk_bf16_f32 v60, v72, v73
    v_cvt_pk_bf16_f32 v61, v74, v75
    v_pk_mul_f32 v[76:77], v[76:77], v[58:59] op_sel_hi:[1,0]
    v_pk_mul_f32 v[78:79], v[78:79], v[58:59] op_sel_hi:[1,0]
    v_cvt_pk_bf16_f32 v62, v76, v77
    v_cvt_pk_bf16_f32 v63, v78, v79
    ds_write_b128 v{vX2W}, v[60:63] offset:{L_X2 + 512*w}
    ''')
    OACC = [16, 20, 24, 28, 32, 36, 56, 64, 68]
    stamp(k, cfg, 'E')
    for a in list(range(30, 40, 2)) + [56, 58, 64, 66, 68, 70]: k.I(f'v_mov_b64 {vr(a,2)}, 0')
    k.wait(lg=0)
    k.I('s_barrier')
    OA = [72, 76]
    for kp in range(2): k.I(f'ds_read_b128 {vr(OA[kp],4)}, v{vL16} offset:{L_X2 + 1024*kp}')
    stamp(k, cfg, 'F')
    mf = [SM(OACC[0], OA[0], vr(WB[0], 8)), SM(OACC[0], OA[1], vr(WB[1], 8))]
    for i in range(4):
        for kp in range(2):
            nm = f'O{i}{kp}'
            for u in range(2):
                mf.append(SM(OACC[1 + 2*i + u], OA[kp], vr(WB[u], 8) if nm in LDS_CH else W(nm, u)))
    fill = {}
    wreads('O11', [0, 1, 2, 3], WB); wreads('O31', [8, 9, 10, 11], WB)
    def fin(a): return [f'v_add_f32 v{a}, v{a}, v{a+2}', f'v_add_f32 v{a+1}, v{a+1}, v{a+3}']
    o = OACC[0]
    add(6, f'buffer_store_dword v60, v{vPSO}, {ws}, s{sP0} offen {st}')
    add(3, fin(o)[0]); add(4, fin(o)[1]); add(5, f'v_cvt_pk_bf16_f32 v60, v{o}, v{o+1}')
    post = []
    for i in range(4):
        a, b = OACC[1 + 2*i], OACC[2 + 2*i]
        d = 62 if i % 2 == 0 else 60
        seq = fin(a) + [f'v_cvt_pk_bf16_f32 v{d}, v{a}, v{a+1}'] + fin(b) + [f'v_cvt_pk_bf16_f32 v{d+1}, v{b}, v{b+1}',
               f'buffer_store_dwordx2 {vr(d,2)}, v{vPST}, {ws}, s{sP0+i} offen {st}']
        p0 = 2 + 4*i + 4
        if i < 3:
            add(p0, seq[0], seq[1]); add(p0 + 1, seq[2], seq[3]); add(p0 + 2, seq[4], seq[5]); add(p0 + 3, seq[6])
        else: post = [seq[0], seq[1], seq[2], f'v_pk_add_f32 {vr(b,2)}, {vr(b,2)}, {vr(b+2,2)}', seq[5], seq[6]]
    interleave(k, mf, fill)
    for s in post: k.I(s)
    stamp(k, cfg, 'hop1')
    AS, D = 44, 40
    def red_post(rd, so, retry):
        k.I(f'v_cmp_u_f32 vcc, v{D}, v{D}')
        for r in (8, 4):
            for j in range(4):
                k.I(f'v_add_f32_dpp v{D+j}, v{D+j}, v{D+j} row_ror:{r} row_mask:0xf bank_mask:0xf')
        k.I(f'''
        v_cvt_pk_bf16_f32 v{rd}, v{D}, v{D+1}
        v_cvt_pk_bf16_f32 v{rd+1}, v{D+2}, v{D+3}
        s_cbranch_vccnz {retry}
        buffer_store_dwordx2 {vr(rd,2)}, v{vRST}, {ws}, s{so} offen {st}
        ''')
    def red_mfma(r):
        k.I(f'v_mfma_f32_16x16x32_bf16 {vr(D,4)}, {vr(AS,4)}, {vr(r,4)}, 0', nocheck=True)
        k.I(f'v_mfma_f32_16x16x32_bf16 {vr(D,4)}, {vr(AS,4)}, {vr(r+4,4)}, {vr(D,4)}', nocheck=True)
    def red_loads(r, so):
        k.I(f'buffer_load_dwordx4 {vr(r,4)}, v{vL16}, {ws}, s{so} offen sc1', nocheck=True)
        k.I(f'buffer_load_dwordx4 {vr(r+4,4)}, v{vL16}, {ws}, s{so} offen offset:1024 sc1', nocheck=True)
    if EXW:
        k.I(f's_cmp_eq_u32 s{sEX}, 0')
        k.I(f's_cbranch_scc0 {P}_h1a')
        red_loads(24, sPX)
        k.label(P + '_h1a')
    pre = [f'v_mov_b32 v{D}, 0x3f80', f'v_cndmask_b32 v{D}, v{D}, 1.0, s[{sMSK}:{sMSK+1}]']
    pre += [f'v_cndmask_b32 v{AS+n}, 0, v{D}, s[{sMSK+2+2*n}:{sMSK+3+2*n}]' for n in range(4)]
    pre += lds_frag_reads('Q0', 0, WR[0]) + lds_frag_reads('Q0', 1, WR[1])
    nb = min(len(pre), d1 // 5)
    for s in pre[:nb]: k.I(s)
    k.nop(max(d1 - 5*nb, 0) // 4)
    red_loads(16, sPU)
    for s in pre[nb:]: k.I(s)
    if EXW:
        k.I(f's_cbranch_scc0 {P}_h1w')
        k.raw('  s_waitcnt vmcnt(2)')
        k.label(P + '_h1x')
        red_mfma(24)
        red_post(RD + 2, sMX, P + '_rx')
        k.label(P + '_h1xd')
        k.raw('  s_waitcnt vmcnt(1)')
        k.I(f's_branch {P}_h1m')
        k.label(P + '_h1w')
    k.raw('  s_waitcnt vmcnt(0)')
    k.label(P + '_h1m')
    k.vm = []
    red_mfma(16)
    red_post(RD, sMU, P + '_ru')
    k.label(P + '_h1d')
    stamp(k, cfg, 'hop2')
    k.I(f's_cmp_eq_u32 s{sSTEP}, {NSTEP}')
    k.I(f's_cbranch_scc1 {P}_done')
    k.I(f'v_readfirstlane_b32 s{sFLG}, v{vLAND}')
    for a in range(16, 32, 2): k.I(f'v_mov_b64 {vr(a,2)}, 0')
    k.nop(max(d2 - 56, 0) // 4)
    k.label(P + '_h2')
    k.I(f'''
    buffer_load_dwordx4 {vr(MA[2],4)}, v{vL16}, {ws}, s{sMC8} offen sc1
    buffer_load_dwordx4 {vr(MA[0],4)}, v{vL16}, {ws}, s{sMCW} offen sc1
    buffer_load_dwordx4 {vr(MA[1],4)}, v{vL16}, {ws}, s{sMCW} offen offset:1024 sc1
    s_sub_u32 s{sBUD}, s{sBUD}, 1
    s_cbranch_scc1 L_exit
    ''', nocheck=True)
    t = MA[3]
    k.wait(vm=1, lg=0)
    k.I(f'v_max3_u32 v{t}, v{MA[2]}, v{MA[2]+2}, v{MA[0]}')
    k.I(f'v_max_u32 v{t}, v{t}, v{MA[0]+2}')
    k.wait(vm=0)
    k.I(f'''
    v_max3_u32 v{t}, v{t}, v{MA[1]}, v{MA[1]+2}
    v_cmp_eq_u32 vcc, -1, v{t}
    s_cbranch_vccz {P}_loop
    s_branch {P}_h2
    ''')
    rets = [('_ru', 16, sPU, sMU, '_h1m', '_h1d', RD)]
    if EXW: rets.append(('_rx', 24, sPX, sMX, '_h1x', '_h1xd', RD + 2))
    for nm, r, so, sm, back, done, rd in rets:
        k.reset()
        k.label(P + nm)
        k.I(f's_sub_u32 s{sBUD}, s{sBUD}, 1')
        k.I('s_cbranch_scc1 L_exit')
        k.I(f's_and_b32 s{sT}, s{sBUD}, 15')
        k.I(f's_cbranch_scc1 {P}{nm}_ld')
        k.I(f'v_max3_u32 v{D}, v{r}, v{r+3}, v{r+4}')
        k.I(f'v_max_u32 v{D}, v{D}, v{r+7}')
        k.I(f'v_cmp_eq_u32 vcc, -1, v{D}')
        k.I(f's_cbranch_vccz {P}{nm}_nan')
        k.label(P + nm + '_ld')
        red_loads(r, so)
        k.wait(vm=0)
        k.I(f's_branch {P}{back}')
        k.label(P + nm + '_nan')
        k.I(f'v_min_u32 v{rd}, -2, v{rd}\nv_min_u32 v{rd+1}, -2, v{rd+1}')
        k.I(f'buffer_store_dwordx2 {vr(rd,2)}, v{vRST}, {ws}, s{sm} offen {st}')
        k.nop(2)
        k.I(f's_branch {P}{done}')
    k.reset()
    k.label(P + '_kvwait')
    k.I(f'''
    buffer_load_dword v{vLAND}, off, {ws}, s{sFKVX} sc1
    s_sub_u32 s{sBUD}, s{sBUD}, 1
    s_cbranch_scc1 L_exit
    s_waitcnt vmcnt(0)
    v_cmp_eq_u32 vcc, 0, v{vLAND}
    s_cbranch_vccnz {P}_kvwait
    v_lshlrev_b32 v{vLAND}, 2, v{vL16}
    v_and_b32 v{vLAND}, 0xfff, v{vLAND}
    s_branch {P}_kvok
    ''')
    k.reset()
    k.label(P + '_done')
    k.I(f'buffer_store_dwordx2 {vr(RD,2)}, v{vRST}, {ws}, s{sMHU} offen sc1')
    if EXW:
        k.I(f's_cmp_eq_u32 s{sEX}, 0')
        k.I(f's_cbranch_scc0 {P}_done2')
        k.I(f'buffer_store_dwordx2 {vr(RD+2,2)}, v{vRST}, {ws}, s{sMHX} offen sc1')
        k.label(P + '_done2')
    if cfg.get('stamps'):
        k.raw('  s_memtime s[78:79]\n  s_memrealtime s[74:75]\n  s_waitcnt lgkmcnt(0)')
        for i in range(10): k.I(f'v_mov_b32 v{20+i}, s{12+i if i < 8 else 80+2*i}')
        k.I(f'v_mov_b32 v30, s78\nv_mov_b32 v31, s{sBUD}\nv_mov_b32 v32, s100\nv_mov_b32 v33, s74\nv_mov_b32 v34, s26\nv_mov_b32 v35, 0')
        k.I(f's_add_u32 s{sT}, s{sU64}, {WS_STAMP:#x}')
        for i in range(4): k.I(f'buffer_store_dwordx4 {vr(20+4*i,4)}, off, {ws}, s{sT} offset:{16*i}')
    k.I('s_branch L_exit')
```

```python
from asmlib import *
from layout import *

S_WS, S_DBG, S_A, S_B, S_C, S_D = 4, 8, 12, 16, 20, 24
sPOOL, sSLOT, sW, sBUD, sFOREIGN = 28, 29, 30, 31, 32
BUDGET = 1 << 21

def srd(n): return f's[{n}:{n+3}]'

def load_srds(k, pairs):
    for s, name in pairs:
        k.I(f's_load_dwordx2 s[{s}:{s+1}], s[0:1], {KA[name]}')
    k.wait(lg=0)
    for s, name in pairs:
        k.I(f's_mov_b32 s{s+2}, {SZ[name]:#x}')
        k.I(f's_mov_b32 s{s+3}, 0x20000')

def frag_reg(dest, off, n):
    kind, base = dest
    return vr(base + off, n, kind)

def load_chunks(k, chunks, sLW, sT, vLin, vtmp, nslot=9, after_first=None):
    n = len(chunks)
    def dma(c):
        ch = chunks[c]; slot = c % nslot
        for i in range(4):
            k.I(f's_add_u32 m0, s{sLW}, {slot*4096 + i*1024}')
            k.I(ch['soff'](i))
            k.I(f"buffer_load_dwordx4 {ch['vdma']}, {srd(ch['srd'])}, s{sT} offen lds")
    issued = min(nslot, n)
    for c in range(issued): dma(c)
    for c in range(n):
        ch = chunks[c]; slot = c % nslot
        k.wait(vm=4 * (issued - 1 - c))
        if c == 0 and after_first: after_first()
        dest = ch['dest'] or [('v', vtmp), ('v', vtmp + 8)]
        for u in range(2):
            for hf in range(2):
                for sub in range(2):
                    k.I(f"ds_read_b64_tr_b16 {frag_reg(dest[u], 4*hf + 2*sub, 2)}, {ch['vtr']} offset:{slot*4096 + ch['imm'](u, hf, sub)}")
        k.wait(lg=0)
        if ch['dest'] is None:
            for q in range(4):
                k.I(f'ds_write_b128 v{vLin}, {vr(vtmp + 4*q, 4)} offset:{slot*4096 + q*1024}')
        if issued < n:
            assert ch['dest'] is not None
            dma(issued); issued += 1
    k.wait(vm=0, lg=0)

def spin_dbg(k, name, off, cond_lines, vt=(16, 17)):
    a, d = vt
    k.I(f'v_mov_b32 v{a}, {off}')
    k.label(name)
    k.I(f'buffer_load_dword v{d}, v{a}, {srd(S_DBG)}, 0 offen sc1')
    k.I(f's_sub_u32 s{sBUD}, s{sBUD}, 1')
    k.I('s_cbranch_scc1 L_exit')
    k.wait(vm=0)
    k.I(f'v_readfirstlane_b32 s33, v{d}')
    k.I(cond_lines)
    k.I(f's_cbranch_scc1 {name}_ok')
    k.I('s_sleep 2')
    k.I(f's_branch {name}')
    k.label(name + '_ok')
    k.reset()

def mask64(f):
    m = 0
    for l in range(64):
        if f(l): m |= 1 << l
    return m
def set_mask(k, s, f):
    m = mask64(f)
    k.I(f's_mov_b32 s{s}, {m & 0xffffffff:#x}'); k.I(f's_mov_b32 s{s+1}, {m >> 32:#x}')

def interleave(k, mf, fill):
    for i, m in enumerate(mf):
        k.I(m)
        fl = fill.get(i, [])
        isv = lambda f: isinstance(f, str) and f.startswith('v_')
        for f in [f for f in fl if not isv(f)] + [f for f in fl if isv(f)]: k.I(f) if isinstance(f, str) else f()
```

```python
WS_SIZE = 0x10000000
WS_P    = 0x0
P_SLOT  = 144*2048
WS_M    = 0xA0000
M_SLOT  = 9216
WS_F    = 0xB0000
F_KVX   = WS_F
F_OCNT  = WS_F+0x2000
F_SIZE  = 0x4000
WS_G    = 0xC0000
WS_R    = 0xC2000
WS_SEL  = 0xC4000
WS_UPD  = 0xC5000
WS_MH   = 0x200000
WS_MP   = 0x100000
WS_KVX  = 0x1000000
WS_O    = 0x3000000
OOB     = 0x40000000
LDS_OOB = 0x38000
SENT_P  = 0x7FA57FA5
D_POOL=0
D_CHAIN=32
D_INIT=64
D_RS=96
D_MOD1=128
D_MOD2=160
KA = dict(x=0, mem0=8, Wq=16, Wk=24, Wv=32, Wo=40, wr=64, wg=72, wu=80, wd=88, gw=96, out=104, dbg=112, ws=120)
SZ = dict(x=2048*1152, mem0=9216, Wq=576*8192, Wk=576*8192, Wv=576*8192, Wo=4096*1152, wr=1152, wg=576*9216, wu=576*9216,
          wd=4608*1152, gw=1152, out=2048*1152, dbg=256, ws=WS_SIZE)
WS_STAMP = 0xF00000
N_INIT = 6
```

```python
from common import *
import numpy as np
def f32b(x): return int(np.float32(x).view(np.uint32))
LOG2E = 1.4426950408889634
ws = srd(S_WS)

def wdest27(i):
    if i < 16: return [('a', 16*i), ('a', 16*i + 8)]
    return [('v', 80 + 16*(i-16)), ('v', 88 + 16*(i-16))]
def fr(d, off=0, n=8): return vr(d[1] + off, n, d[0])

def lane_consts(k, lane, c, g):
    k.I(f'v_mov_b32 v{lane}, v0\nv_and_b32 v{c}, 15, v{lane}\nv_lshrrev_b32 v{g}, 4, v{lane}')
def sparse_idx(k, vI, lane, t0, t1):
    k.I(f'''
    v_mov_b32 v{vI}, 0x4444
    v_mov_b32 v{t0}, 0xeeee
    v_and_b32 v{t1}, 2, v{lane}
    v_cmp_ne_u32 vcc, 0, v{t1}
    v_cndmask_b32 v{vI}, v{vI}, v{t0}, vcc
    ''')
def signal(k, rs, so, off, vone, vl0):
    k.wait(vm=0)
    k.I('s_barrier')
    k.I(f'v_mov_b32 v{vone}, 1')
    k.I(f'buffer_atomic_add v{vone}, v{vl0}, {rs}, {so} offen offset:{off}')
def lane0_off(k, v, lane):
    k.I(f's_lshl_b32 s33, s{sW}, 6\nv_or_b32 v{v}, s33, v{lane}\nv_min_u32 v{v}, 1, v{v}\nv_lshlrev_b32 v{v}, 30, v{v}')
def xlane_g(k, op, v, t, fill=()):
    for sw in ('v_permlane16_swap_b32', 'v_permlane32_swap_b32'):
        k.I(f'v_mov_b32 v{t}, v{v}'); k.I(f'{sw} v{t}, v{v}'); k.I(f'{op} v{v}, v{v}, v{t}')
def rnd_bf16(k, pairs, t):
    for a, b in pairs:
        k.I(f'v_cvt_pk_bf16_f32 v{t}, v{a}, v{b}\nv_lshlrev_b32 v{a}, 16, v{t}\nv_and_b32 v{b}, 0xffff0000, v{t}')

def role_init(k, cfg):
    k.label('L_init'); k.reset()
    k.I(f'''
    s_sub_u32 s34, s{sPOOL}, 5
    s_lshl_b32 s34, s34, 1
    s_add_u32 s34, s34, s{sSLOT}
    s_sub_u32 s34, s34, 30
    s_lshl_b32 s34, s34, 2
    s_add_u32 s34, s34, s{sW}
    v_lshlrev_b32 v1, 4, v0
    v_mov_b64 v[4:5], -1
    v_mov_b64 v[6:7], -1
    v_mov_b64 v[8:9], 0
    v_mov_b64 v[10:11], 0
    s_lshl_b32 s35, s34, 10
    s_add_u32 s35, s35, {WS_F}
    s_cmp_lt_u32 s34, 16
    s_cbranch_scc0 L_init2
    buffer_store_dwordx4 v[8:11], v1, {ws}, s35 offen sc1
    ''')
    k.label('L_init2')
    k.I(f's_mul_i32 s35, s34, 24576\ns_add_u32 s35, s35, {WS_MH}')
    for i in range(24):
        k.I(f'buffer_store_dwordx4 v[4:7], v1, {ws}, s35 offen offset:{(i%4)*1024} sc1')
        if i % 4 == 3: k.I('s_add_u32 s35, s35, 4096')
    lane0_off(k, 2, 0)
    signal(k, srd(S_DBG), 0, D_INIT, 3, 2)
    k.I('s_branch L_exit')

def role_pa(k, cfg):
    k.label('L_pa'); k.reset()
    sH, sJ, sLW, sT, sSEG, sXS, sXB, sST, sIT, sKV, sFL, sMH, sO, sOC, sC = range(34, 49)
    vL16, vIDX, vXD, vSTW, vQR, vVR, vIMW, vL8, vDLT, vL0, vXR = range(11)
    XB, STB, IMG = 0, 73728, 122880
    lane, c, g, t0, t1, t2 = 79, 78, 77, 76, 75, 74
    load_srds(k, [(S_A, 'Wq'), (S_B, 'Wk'), (S_C, 'Wv'), (S_D, 'x')])
    lane_consts(k, lane, c, g)
    k.I(f'''
    s_sub_u32 s{sT}, s{sPOOL}, 1
    s_lshl_b32 s{sT}, s{sT}, 5
    s_add_u32 s{sT}, s{sT}, s{sSLOT}
    s_lshr_b32 s{sH}, s{sT}, 2
    s_and_b32 s{sJ}, s{sT}, 3
    v_lshlrev_b32 v{vL16}, 4, v{lane}
    v_lshlrev_b32 v{vL8}, 3, v{lane}
    v_add_u32 v{vL8}, {IMG}, v{vL8}
    v_mul_u32_u24 v{vXD}, 1152, v{c}
    v_lshl_add_u32 v{vXD}, v{g}, 4, v{vXD}
    s_lshr_b32 s{sT}, s{sW}, 1
    s_mul_i32 s{sT}, s{sT}, {16*1152}
    s_and_b32 s33, s{sW}, 1
    s_mul_i32 s33, s33, 576
    s_add_u32 s{sT}, s{sT}, s33
    v_add_u32 v{vXD}, s{sT}, v{vXD}
    v_lshlrev_b32 v{t0}, 5, v{c}
    v_lshl_add_u32 v{t0}, v{g}, 3, v{t0}
    s_lshl_b32 s{sT}, s{sW}, 10
    s_add_u32 s{sT}, s{sT}, {IMG}
    v_add_u32 v{vIMW}, s{sT}, v{t0}
    s_and_b32 s{sT}, s{sW}, 1
    s_lshl_b32 s{sT}, s{sT}, 4
    v_lshlrev_b32 v{t0}, 2, v{g}
    v_sub_u32 v{vDLT}, v{c}, v{t0}
    v_add_u32 v{vDLT}, s{sT}, v{vDLT}
    s_mov_b32 s{sC}, {f32b(128**-0.5 * LOG2E):#x}
    s_mov_b32 s{sXS}, s{sJ}
    s_mov_b32 s{sXB}, 0
    ''')
    sparse_idx(k, vIDX, lane, t0, t1)
    lane0_off(k, vL0, lane)
    def xdma():
        k.I(f's_mul_i32 s{sT}, s{sXS}, {32*1152}')
        k.I(f's_mul_i32 s33, s{sW}, 9216\ns_add_u32 s33, s33, s{sXB}')
        for i in range(9):
            k.I(f's_add_u32 m0, s33, {i*1024}')
            k.I(f'buffer_load_dwordx4 v{vXD}, {srd(S_D)}, s{sT} offen lds')
            if i < 8: k.I(f's_add_u32 s{sT}, s{sT}, 64')
        k.I(f's_add_u32 s{sXS}, s{sXS}, 4\ns_min_u32 s{sXS}, s{sXS}, 63\ns_xor_b32 s{sXB}, s{sXB}, 36864')
    xdma()
    vD, vTN = 40, 41
    k.I(f'''
    s_mul_i32 s{sLW}, s{sW}, 28672
    s_add_u32 s{sLW}, s{sLW}, 49152
    v_lshrrev_b32 v{t0}, 2, v{lane}
    v_and_b32 v{t1}, 3, v{lane}
    v_lshlrev_b32 v{t1}, 4, v{t1}
    v_lshl_add_u32 v{vD}, v{t0}, 13, v{t1}
    s_lshl_b32 s{sT}, s{sH}, 8
    s_lshl_b32 s33, s{sW}, 6
    s_add_u32 s{sT}, s{sT}, s33
    v_add_u32 v{vD}, s{sT}, v{vD}
    v_lshrrev_b32 v{t0}, 2, v{c}
    v_and_b32 v{t1}, 3, v{c}
    v_lshl_add_u32 v{t2}, v{g}, 3, v{t0}
    v_lshlrev_b32 v{t2}, 6, v{t2}
    v_lshl_add_u32 v{vTN}, v{t1}, 3, v{t2}
    v_add_u32 v{vTN}, s{sLW}, v{vTN}
    ''')
    WD = {}
    chunks = []
    for n in range(9):
        for m, sr in (('Q', S_A), ('K', S_B), ('V', S_C)):
            d = wdest27(len(chunks)); WD[m, n] = d
            chunks.append(dict(srd=sr, vdma=f'v{vD}', soff=lambda i, n=n: f's_mov_b32 s{sT}, {(n << 19) | (i << 17):#x}', vtr=f'v{vTN}',
                               imm=lambda u, hf, sub: (32*hf + 4*sub)*64 + 32*u, dest=d))
    load_chunks(k, chunks, sLW, sT, vL16, 56, nslot=7)
    spin_dbg(k, 'L_pa_init', D_INIT, f's_cmp_ge_u32 s33, {N_INIT}')
    k.I(f'''
    s_lshl_b32 s{sKV}, s{sH}, 20
    s_lshl_b32 s{sT}, s{sJ}, 14
    s_add_u32 s{sKV}, s{sKV}, s{sT}
    s_lshl_b32 s{sT}, s{sW}, 12
    s_add_u32 s{sKV}, s{sKV}, s{sT}
    s_add_u32 s{sKV}, s{sKV}, {WS_KVX:#x}
    s_lshl_b32 s{sFL}, s{sH}, 8
    s_lshl_b32 s{sT}, s{sJ}, 2
    s_add_u32 s{sFL}, s{sFL}, s{sT}
    s_add_u32 s{sFL}, s{sFL}, {F_KVX:#x}
    s_mul_i32 s{sMH}, s{sJ}, {M_SLOT}
    s_add_u32 s{sMH}, s{sMH}, {WS_MH:#x}
    s_lshl_b32 s{sO}, s{sJ}, 18
    s_and_b32 s{sT}, s{sW}, 1
    s_lshl_b32 s{sT}, s{sT}, 17
    s_add_u32 s{sO}, s{sO}, s{sT}
    s_lshl_b32 s{sT}, s{sH}, 12
    s_add_u32 s{sO}, s{sO}, s{sT}
    s_lshr_b32 s{sT}, s{sW}, 1
    s_lshl_b32 s{sT}, s{sT}, 11
    s_add_u32 s{sO}, s{sO}, s{sT}
    s_add_u32 s{sO}, s{sO}, {WS_O:#x}
    s_lshl_b32 s{sOC}, s{sJ}, 7
    s_add_u32 s{sOC}, s{sOC}, {F_OCNT:#x}
    s_lshl_b32 s{sT}, s{sW}, 10
    s_add_u32 s{sT}, s{sT}, {STB}
    v_add_u32 v{vSTW}, s{sT}, v{vL16}
    s_and_b32 s{sT}, s{sW}, 1
    s_lshl_b32 s{sT}, s{sT}, 12
    s_add_u32 s{sT}, s{sT}, {STB}
    v_add_u32 v{vQR}, s{sT}, v{vL16}
    s_lshr_b32 s{sT}, s{sW}, 1
    s_lshl_b32 s{sT}, s{sT}, 11
    s_add_u32 s{sT}, s{sT}, {STB + 16384}
    v_add_u32 v{vVR}, s{sT}, v{vL16}
    v_mov_b32 v{vXR}, v{vL16}
    s_mov_b32 s{sST}, 0
    s_mov_b32 s{sIT}, 0
    s_barrier
    ''')
    k.label('L_pa_proj'); k.reset()
    xdma()
    A = {}
    i = 0
    for m in 'QKV':
        for u in range(2):
            for tt in range(2): A[m, u, tt] = 16 + 4*i; i += 1
    XF = lambda ks, tt: 64 + 8*(ks & 1) + 4*tt
    def xread(ks):
        for tt in range(2): k.I(f'ds_read_b128 {vr(XF(ks,tt),4)}, v{vXR} offset:{(tt*18 + ks)*1024}')
    xread(0)
    for ks in range(18):
        first = True
        for m in 'QKV':
            for u in range(2):
                wf = fr(WD[m, ks >> 1][u], 4*(ks & 1), 4)
                for tt in range(2):
                    a = vr(A[m, u, tt], 4); x = vr(XF(ks, tt), 4)
                    ops = (wf, x) if m != 'V' else (x, wf)
                    k.I(f'v_mfma_f32_16x16x32_bf16 {a}, {ops[0]}, {ops[1]}, {a if ks else 0}')
                    if first and tt == 1 and ks < 17: xread(ks + 1); first = False
    quads = [('Q', 0), ('Q', 1), ('K', 0), ('K', 1), ('V', 0), ('V', 1)]
    for qi, (m, x) in enumerate(quads):
        d = 64 + 4*(qi % 4)
        src = [A[m, 0, x], A[m, 1, x]] if m != 'V' else [A[m, x, 0], A[m, x, 1]]
        for h in range(2):
            k.I(f'v_cvt_pk_bf16_f32 v{d+2*h}, v{src[h]}, v{src[h]+1}\nv_cvt_pk_bf16_f32 v{d+2*h+1}, v{src[h]+2}, v{src[h]+3}')
        k.I(f'ds_write_b128 v{vSTW}, {vr(d,4)} offset:{qi*4096}')
        if qi >= 2: k.I(f'buffer_store_dwordx4 {vr(d,4)}, v{vL16}, {ws}, s{sKV} offen offset:{(qi-2)*1024} sc1')
    k.wait(vm=0, lg=0)
    k.I(f'''
    s_barrier
    buffer_store_dword v{vIDX}, v{vL0}, {ws}, s{sFL} offen sc1
    s_add_u32 s{sKV}, s{sKV}, 65536
    s_add_u32 s{sFL}, s{sFL}, 16
    v_xor_b32 v{vXR}, 36864, v{vXR}
    s_bitcmp1_b32 s{sIT}, 0
    s_cselect_b32 s{sT}, -1, 1
    s_mul_i32 s{sT}, s{sT}, 24576
    v_add_u32 v{vSTW}, s{sT}, v{vSTW}
    s_add_u32 s{sIT}, s{sIT}, 1
    s_cmp_eq_u32 s{sIT}, 1
    s_cbranch_scc1 L_pa_proj
    ''')
    k.label('L_pa_att'); k.reset()
    Q, KF, S0, MAf, KA = 16, 32, 64, 16, 52
    vKR = 11
    k.I(f'v_add_u32 v{vKR}, s{sST}, v{vL16}\nv_add_u32 v{vKR}, {STB + 8192}, v{vKR}')
    for ks in range(4): k.I(f'ds_read_b128 {vr(Q+4*ks,4)}, v{vQR} offset:{ks*1024}')
    for t in range(2):
        for ks in range(4): k.I(f'ds_read_b128 {vr(KF+16*t+4*ks,4)}, v{vKR} offset:{t*4096 + ks*1024}')
    for ks in range(4):
        for t in range(2):
            a = vr(S0+4*t, 4)
            k.I(f'v_mfma_f32_16x16x32_bf16 {a}, {vr(KF+16*t+4*ks,4)}, {vr(Q+4*ks,4)}, {a if ks else 0}')
    k.I(f'v_mov_b32 v76, {f32b(-1e9 / 128**-0.5):#x}')
    for t in range(2):
        for r in range(4):
            k.I(f'v_cmp_gt_i32 vcc, {16*t + r}, v{vDLT}\nv_cndmask_b32 v{S0+4*t+r}, v{S0+4*t+r}, v76, vcc')
    AC = dict(k0=52, k1=56, v0=60, v1=72)
    for a in AC.values(): k.I(f'v_mov_b64 {vr(a,2)}, 0\nv_mov_b64 {vr(a+2,2)}, 0')
    k.I(f's_add_u32 s{sT}, s{sMH}, 4096\ns_add_u32 s33, s{sMH}, 8192')
    k.label('L_pa_poll')
    for n in range(9):
        so = (sMH, sT, 33)[n // 4]
        k.I(f'buffer_load_dwordx4 {vr(MAf+4*n,4)}, v{vL16}, {ws}, s{so} offen offset:{(n%4)*1024} sc1')
    k.I(f's_sub_u32 s{sBUD}, s{sBUD}, 1\ns_cbranch_scc1 L_exit')
    k.I(f'v_max_u32 v76, v{MAf}, v{MAf+2}')
    for n in range(1, 9): k.I(f'v_max3_u32 v76, v76, v{MAf+4*n}, v{MAf+4*n+2}')
    k.I('v_cmp_eq_u32 vcc, -1, v76\ns_cbranch_vccnz L_pa_poll')
    for n in range(9):
        for m in 'KV':
            for u in range(2):
                k.I(f'v_smfmac_f32_16x16x64_bf16 {vr(AC[m.lower()+str(u)],4)}, {vr(MAf+4*n,4)}, {fr(WD[m,n][u])}, v{vIDX}')
    VF = 32
    for ks in range(4): k.I(f'ds_read_b128 {vr(Q+4*ks,4)}, v{vQR} offset:{ks*1024}')
    for u in range(2):
        ka, va = AC[f'k{u}'], AC[f'v{u}']
        k.I(f'''
        v_pk_add_f32 {vr(ka,2)}, {vr(ka,2)}, {vr(ka+2,2)}
        v_pk_add_f32 {vr(va,2)}, {vr(va,2)}, {vr(va+2,2)}
        v_cvt_pk_bf16_f32 v{76+2*u}, v{ka}, v{ka+1}
        v_cvt_pk_bf16_f32 v{77+2*u}, v{va}, v{va+1}
        ds_write_b64 v{vIMW}, {vr(76+2*u,2)} offset:{512*u}
        ''')
    for et in range(4): k.I(f'ds_read_b128 {vr(VF+4*et,4)}, v{vVR} offset:{(et&1)*4096 + (et>>1)*1024}')
    k.I(f's_and_b32 s{sT}, s{sW}, 1\ns_lshl_b32 s{sT}, s{sT}, 10\nv_subrev_u32 v{vKR}, s{sT}, v{vIMW}')
    k.wait(lg=4)
    k.I('s_barrier')
    KM, VM = 48, 12
    for ks in range(4):
        for u in range(2): k.I(f'ds_read_b64_tr_b16 {vr(KM+4*ks+2*u,2)}, v{vL8} offset:{ks*1024 + u*512}')
    for et in range(4): k.I(f'ds_read_b32 v{VM+et}, v{vKR} offset:{et*512 + 4}')
    SMm = 72
    for ks in range(4):
        k.I(f'v_mfma_f32_16x16x32_bf16 {vr(SMm,4)}, {vr(KM+4*ks,4)}, {vr(Q+4*ks,4)}, {vr(SMm,4) if ks else 0}')
    m, t = 76, 77
    k.I(f'''
    v_max3_f32 v{m}, v64, v65, v66
    v_max3_f32 v{m}, v{m}, v67, v68
    v_max3_f32 v{m}, v{m}, v69, v70
    v_max_f32 v{m}, v{m}, v71
    v_max3_f32 v{m}, v{m}, v72, v73
    ''')
    xlane_g(k, 'v_max_f32', m, t)
    k.I(f'v_mul_f32 v{m}, s{sC}, v{m}')
    for r in range(64, 74): k.I(f'v_fma_f32 v{r}, v{r}, s{sC}, -v{m}')
    for r in range(64, 74): k.I(f'v_exp_f32 v{r}, v{r}')
    k.I(f'v_add_f32 v{m}, v64, v65')
    for r in range(66, 74): k.I(f'v_add_f32 v{m}, v{m}, v{r}')
    xlane_g(k, 'v_add_f32', m, t)
    k.I(f'v_rcp_f32 v{m}, v{m}')
    for r in range(64, 74): k.I(f'v_mul_f32 v{r}, v{r}, v{m}')
    PB = 16
    for r in range(4): k.I(f'v_cvt_pk_bf16_f32 v{PB+r}, v{64+2*r}, v{65+2*r}')
    k.I(f'v_cvt_pk_bf16_f32 v20, v72, v73\nv_mov_b32 v21, 0\nv_mov_b32 v22, 0\nv_mov_b32 v23, v20')
    O = 48
    for et in range(4): k.I(f'v_mfma_f32_16x16x32_bf16 {vr(O+4*et,4)}, {vr(VF+4*et,4)}, {vr(PB,4)}, 0')
    for et in range(4):
        k.I(f'v_mfma_f32_16x16x16_bf16 {vr(O+4*et,4)}, {vr(VM+(et&2),2)}, {vr(20+2*(et&1),2)}, {vr(O+4*et,4)}')
    for mm in range(2):
        for r in range(4): k.I(f'v_cvt_pk_bf16_f32 v{24+4*mm+r}, v{O+8*mm+2*r}, v{O+8*mm+2*r+1}')
        k.I(f'buffer_store_dwordx4 {vr(24+4*mm,4)}, v{vL16}, {ws}, s{sO} offen offset:{mm*1024} sc1')
    signal(k, ws, f's{sOC}', 0, 76, vL0)
    k.I(f'''
    s_add_u32 s{sMH}, s{sMH}, {4*M_SLOT}
    s_add_u32 s{sO}, s{sO}, {4 << 18}
    s_add_u32 s{sOC}, s{sOC}, 512
    s_cmp_eq_u32 s{sST}, 0
    s_cselect_b32 s{sT}, 1, -1
    s_mul_i32 s{sT}, s{sT}, 24576
    s_add_u32 s{sST}, s{sST}, s{sT}
    v_add_u32 v{vQR}, s{sT}, v{vQR}
    v_add_u32 v{vVR}, s{sT}, v{vVR}
    s_cmp_lt_u32 s{sIT}, 16
    s_cbranch_scc1 L_pa_proj
    s_add_u32 s{sIT}, s{sIT}, 1
    s_cmp_eq_u32 s{sIT}, 17
    s_cbranch_scc1 L_pa_att
    s_branch L_exit
    ''')

def role_o(k, cfg):
    k.label('L_o'); k.reset()
    sCS, sLW, sT, sID, sO, sOC, sROW, sPAR = range(34, 42)
    sSEL = 44
    vL16, vEO, vTOK, vRW = 1, 2, 3, 4
    lane, c, g, t0, t1, t2 = 15, 14, 13, 12, 11, 10
    load_srds(k, [(S_A, 'Wo'), (S_B, 'x'), (S_C, 'out')])
    lane_consts(k, lane, c, g)
    vD, vTR = 5, 6
    k.I(f'''
    s_lshl_b32 s{sCS}, s{sSLOT}, 6
    s_sub_u32 s{sID}, s{sPOOL}, 5
    v_lshlrev_b32 v{vL16}, 4, v{lane}
    s_mul_i32 s{sLW}, s{sW}, 36864
    s_add_u32 s{sLW}, s{sLW}, 16384
    v_lshrrev_b32 v{t0}, 2, v{lane}
    v_mul_u32_u24 v{vD}, 1152, v{t0}
    v_and_b32 v{t1}, 3, v{lane}
    v_lshl_add_u32 v{vD}, v{t1}, 4, v{vD}
    s_mul_i32 s{sT}, s{sW}, {1024*1152}
    s_add_u32 s{sT}, s{sT}, s{sCS}
    v_add_u32 v{vD}, s{sT}, v{vD}
    v_lshrrev_b32 v{t0}, 2, v{c}
    v_lshl_add_u32 v{t0}, v{g}, 2, v{t0}
    v_lshlrev_b32 v{t0}, 6, v{t0}
    v_and_b32 v{t1}, 3, v{c}
    v_lshl_add_u32 v{vTR}, v{t1}, 4, v{t0}
    v_add_u32 v{vTR}, s{sLW}, v{vTR}
    v_mul_u32_u24 v{vEO}, 1152, v{c}
    v_lshl_add_u32 v{vEO}, v{g}, 4, v{vEO}
    v_add_u32 v{vEO}, s{sCS}, v{vEO}
    s_lshl_b32 s{sT}, s{sW}, 11
    v_add_u32 v{vRW}, s{sT}, v{vL16}
    s_mov_b32 s{sPAR}, 0
    ''')
    chunks = [dict(srd=S_A, vdma=f'v{vD}', soff=lambda i, n=n: f's_mov_b32 s{sT}, {(64*n + 16*i)*1152}', vtr=f'v{vTR}',
                   imm=lambda u, hf, sub: (32*hf + 16*sub)*64 + 8*u, dest=[('a', 16*n), ('a', 16*n + 8)]) for n in range(16)]
    load_chunks(k, chunks, sLW, sT, vL16, 56)
    spin_dbg(k, 'L_o_init', D_INIT, f's_cmp_ge_u32 s33, {N_INIT}')
    spin_dbg(k, 'L_o_mod', D_MOD2, 's_cmp_ge_u32 s33, 36')
    k.I(f'v_lshlrev_b32 v16, 2, v{lane}\ns_mov_b32 s{sT}, {WS_SEL:#x}')
    k.I(f'buffer_load_dword v17, v16, {ws}, s{sT} offen sc1')
    for i in range(8): k.I(f'v_readlane_b32 s{sSEL+i}, v17, {i}')
    k.label('L_o_task'); k.reset()
    X, U, G = 16, 20, 24
    k.I(f'''
    s_lshl_b32 s{sO}, s{sID}, 17
    s_lshl_b32 s{sT}, s{sW}, 15
    s_add_u32 s{sO}, s{sO}, s{sT}
    s_add_u32 s{sO}, s{sO}, {WS_O:#x}
    s_lshr_b32 s{sOC}, s{sID}, 1
    s_lshl_b32 s{sOC}, s{sOC}, 7
    s_add_u32 s{sOC}, s{sOC}, {F_OCNT:#x}
    s_mul_i32 s{sROW}, s{sID}, {16*1152}
    s_lshl_b32 s{sT}, s{sID}, 4
    v_add_u32 v{vTOK}, s{sT}, v{c}
    buffer_load_dwordx4 {vr(X,4)}, v{vEO}, {srd(S_B)}, s{sROW} offen
    v_lshlrev_b32 v{t0}, 2, v{vTOK}
    s_mov_b32 s{sT}, {WS_G:#x}
    buffer_load_dword v{G}, v{t0}, {ws}, s{sT} offen sc1
    v_mov_b32 v{t0}, {OOB:#x}
    v_lshlrev_b32 v{t1}, 4, v{g}
    v_add_u32 v{t1}, s{sCS}, v{t1}
    ''')
    for i in range(8):
        k.I(f'v_cmp_eq_u32 vcc, s{sSEL+i}, v{vTOK}\nv_cndmask_b32 v{t0}, v{t0}, v{t1}, vcc\nv_add_u32 v{t1}, 1152, v{t1}')
    k.I(f's_mov_b32 s{sT}, {WS_UPD:#x}\nbuffer_load_dwordx4 {vr(U,4)}, v{t0}, {ws}, s{sT} offen sc1')
    k.label('L_o_poll')
    k.I(f'''
    buffer_load_dword v{t2}, off, {ws}, s{sOC} sc1
    s_sub_u32 s{sBUD}, s{sBUD}, 1
    s_cbranch_scc1 L_exit
    s_waitcnt vmcnt(0)
    v_cmp_gt_u32 vcc, 32, v{t2}
    s_cbranch_vccnz L_o_poll
    ''')
    OF = 64
    for n in range(32):
        k.I(f'buffer_load_dwordx4 {vr(OF+4*n,4)}, v{vL16}, {ws}, s{sO} offen offset:{(n%4)*1024} sc1')
        if n % 4 == 3 and n < 31: k.I(f's_add_u32 s{sO}, s{sO}, 4096')
    AC = [32, 36]
    for n in range(32):
        for u in range(2):
            a = vr(AC[u], 4)
            k.I(f'v_mfma_f32_16x16x32_bf16 {a}, {vr(16*(n>>1) + 8*u + 4*(n&1), 4, "a")}, {vr(OF+4*n,4)}, {a if n else 0}')
    k.I(f'v_add_u32 v{t0}, s{sPAR}, v{vRW}')
    for u in range(2): k.I(f'ds_write_b128 v{t0}, {vr(AC[u],4)} offset:{u*1024}')
    k.wait(lg=0)
    k.I(f'''
    s_barrier
    s_cmp_lg_u32 s{sW}, 0
    s_cbranch_scc1 L_o_next
    ''')
    for w in range(1, 4):
        for u in range(2): k.I(f'ds_read_b128 {vr(40+8*(w-1)+4*u,4)}, v{t0} offset:{w*2048 + u*1024}')
    for j in range(4):
        k.I(f'''
        v_lshlrev_b32 v{64+2*j}, 16, v{X+j}
        v_and_b32 v{65+2*j}, 0xffff0000, v{X+j}
        v_lshlrev_b32 v{72}, 16, v{U+j}
        v_and_b32 v{73}, 0xffff0000, v{U+j}
        v_add_f32 v{64+2*j}, v{64+2*j}, v72
        v_add_f32 v{65+2*j}, v{65+2*j}, v73
        ''')
    k.I(f'v_sub_f32 v{G+1}, 1.0, v{G}')
    rnd_bf16(k, [(64+2*j, 65+2*j) for j in range(4)] + [(G, G+1)], 72)
    for j in range(8): k.I(f'v_mul_f32 v{64+j}, v{64+j}, v{G+1}')
    rnd_bf16(k, [(64+2*j, 65+2*j) for j in range(4)], 72)
    for w in range(3):
        for j in range(0, 8, 2): k.I(f'v_pk_add_f32 {vr(32+j,2)}, {vr(32+j,2)}, {vr(40+8*w+j,2)}')
    rnd_bf16(k, [(32+2*j, 33+2*j) for j in range(4)], 72)
    for j in range(8): k.I(f'v_mul_f32 v{32+j}, v{32+j}, v{G}')
    rnd_bf16(k, [(32+2*j, 33+2*j) for j in range(4)], 72)
    for j in range(0, 8, 2): k.I(f'v_pk_add_f32 {vr(32+j,2)}, {vr(32+j,2)}, {vr(64+j,2)}')
    for j in range(4): k.I(f'v_cvt_pk_bf16_f32 v{28+j}, v{32+2*j}, v{33+2*j}')
    k.I(f'buffer_store_dwordx4 v[28:31], v{vEO}, {srd(S_C)}, s{sROW} offen')
    k.label('L_o_next')
    k.I(f'''
    s_xor_b32 s{sPAR}, s{sPAR}, 8192
    s_add_u32 s{sID}, s{sID}, 3
    s_cmp_lt_u32 s{sID}, 128
    s_cbranch_scc1 L_o_task
    s_branch L_exit
    ''')

def sigmoid(k, d, z):
    k.I(f'v_mul_f32 v{d}, {f32b(-LOG2E):#x}, v{z}\nv_exp_f32 v{d}, v{d}\nv_add_f32 v{d}, 1.0, v{d}\nv_rcp_f32 v{d}, v{d}')

def role_mod(k, cfg):
    k.label('L_mod'); k.reset()
    sM, sLW, sT = 34, 35, 36
    vL16, vIDX, vL0, vSEL, vK0, vK1, vL8 = 1, 2, 3, 4, 5, 6, 7
    lane, c, g, t0, t1, t2 = 15, 14, 13, 12, 11, 10
    load_srds(k, [(S_A, 'wr'), (S_B, 'gw'), (S_D, 'x')])
    lane_consts(k, lane, c, g)
    k.I(f'''
    s_sub_u32 s{sM}, s{sPOOL}, 5
    s_mul_i32 s{sM}, s{sM}, 12
    s_add_u32 s{sM}, s{sM}, s{sSLOT}
    s_sub_u32 s{sM}, s{sM}, 18
    v_lshlrev_b32 v{vL16}, 4, v{lane}
    v_lshlrev_b32 v{vL8}, 3, v{lane}
    ''')
    sparse_idx(k, vIDX, lane, t0, t1)
    lane0_off(k, vL0, lane)
    k.I(f's_cmp_ge_u32 s{sM}, 32\ns_cbranch_scc1 L_mod_w')
    XF, RF, GF = 16, 88, 160
    k.I(f'''
    v_mul_u32_u24 v{t0}, 1152, v{c}
    v_lshl_add_u32 v{t0}, v{g}, 4, v{t0}
    v_lshlrev_b32 v{t1}, 4, v{g}
    s_lshl_b32 s{sT}, s{sM}, 2
    s_add_u32 s{sT}, s{sT}, s{sW}
    s_mul_i32 s33, s{sT}, {16*1152}
    ''')
    for ks in range(18):
        k.I(f'buffer_load_dwordx4 {vr(XF+4*ks,4)}, v{t0}, {srd(S_D)}, s33 offen offset:{ks*64}')
        k.I(f'buffer_load_dwordx4 {vr(RF+4*ks,4)}, v{t1}, {srd(S_A)}, 0 offen offset:{ks*64}')
        k.I(f'buffer_load_dwordx4 {vr(GF+4*ks,4)}, v{t1}, {srd(S_B)}, 0 offen offset:{ks*64}')
    ONE, DR, DG = 232, 236, 240
    for r in range(4): k.I(f'v_mov_b32 v{ONE+r}, 0x3f803f80')
    for ks in range(18):
        k.I(f'v_mfma_f32_16x16x32_bf16 {vr(DR,4)}, {vr(RF+4*ks,4)}, {vr(XF+4*ks,4)}, {vr(DR,4) if ks else 0}')
        for j in range(4):
            x, gw = XF+4*ks+j, GF+4*ks+j
            k.I(f'''
            v_lshlrev_b32 v244, 16, v{x}
            v_lshlrev_b32 v245, 16, v{gw}
            v_and_b32 v246, 0xffff0000, v{x}
            v_and_b32 v247, 0xffff0000, v{gw}
            v_mul_f32 v244, v244, v245
            v_mul_f32 v246, v246, v247
            v_cvt_pk_bf16_f32 v{gw}, v244, v246
            ''')
        k.I(f'v_mfma_f32_16x16x32_bf16 {vr(DG,4)}, {vr(ONE,4)}, {vr(GF+4*ks,4)}, {vr(DG,4) if ks else 0}')
    rnd_bf16(k, [(DG, DR)], 244)
    sigmoid(k, 245, DG)
    rnd_bf16(k, [(245, 246)], 244)
    k.I(f'''
    v_ashrrev_i32 v246, 31, v{DR}
    v_or_b32 v246, 0x80000000, v246
    v_xor_b32 v246, v246, v{DR}
    v_and_b32 v246, 0xffff0000, v246
    s_lshl_b32 s{sT}, s{sT}, 4
    v_add_u32 v247, s{sT}, v{c}
    v_sub_u32 v248, 0xffff, v247
    v_or_b32 v246, v246, v248
    v_lshlrev_b32 v247, 2, v247
    v_lshl_add_u32 v247, v{g}, 28, v247
    s_mov_b32 s{sT}, {WS_G:#x}
    buffer_store_dword v245, v247, {ws}, s{sT} offen sc1
    s_mov_b32 s{sT}, {WS_R:#x}
    buffer_store_dword v246, v247, {ws}, s{sT} offen sc1
    ''')
    signal(k, srd(S_DBG), 0, D_RS, 244, vL0)
    k.label('L_mod_w'); k.reset()
    load_srds(k, [(S_A, 'wg'), (S_B, 'wu'), (S_C, 'wd')])
    vD, vDO, vDOo, vTN, vTO, vTOo = 40, 41, 42, 43, 44, 45
    k.I(f'''
    s_mul_i32 s{sLW}, s{sW}, 36864
    s_add_u32 s{sLW}, s{sLW}, 16384
    v_lshrrev_b32 v{t0}, 2, v{lane}
    v_and_b32 v{t1}, 3, v{lane}
    v_lshlrev_b32 v{t1}, 4, v{t1}
    v_mul_u32_u24 v{vD}, 9216, v{t0}
    v_add_u32 v{vD}, v{vD}, v{t1}
    s_lshl_b32 s{sT}, s{sM}, 8
    s_lshl_b32 s33, s{sW}, 6
    s_add_u32 s{sT}, s{sT}, s33
    v_add_u32 v{vD}, s{sT}, v{vD}
    v_mul_u32_u24 v{vDO}, 1152, v{t0}
    v_add_u32 v{vDO}, v{vDO}, v{t1}
    s_mul_i32 s{sT}, s{sM}, 147456
    s_add_u32 s33, s33, s{sT}
    v_add_u32 v{vDO}, s33, v{vDO}
    v_lshrrev_b32 v{t0}, 1, v{lane}
    v_mul_u32_u24 v{vDOo}, 1152, v{t0}
    v_and_b32 v{t1}, 1, v{lane}
    v_lshl_add_u32 v{vDOo}, v{t1}, 4, v{vDOo}
    s_lshl_b32 s33, s{sW}, 5
    s_add_u32 s{sT}, s{sT}, s33
    s_add_u32 s{sT}, s{sT}, 1024
    v_add_u32 v{vDOo}, s{sT}, v{vDOo}
    v_lshrrev_b32 v{t0}, 2, v{c}
    v_and_b32 v{t1}, 3, v{c}
    v_lshl_add_u32 v{t2}, v{g}, 3, v{t0}
    v_lshlrev_b32 v{t2}, 6, v{t2}
    v_lshl_add_u32 v{vTN}, v{t1}, 3, v{t2}
    v_add_u32 v{vTN}, s{sLW}, v{vTN}
    v_lshrrev_b32 v46, 1, v{t0}
    v_lshlrev_b32 v{t2}, 4, v46
    v_lshl_add_u32 v{t2}, v{g}, 2, v{t2}
    v_and_b32 v46, 1, v{t0}
    v_add_u32 v{t2}, v{t2}, v46
    v_lshlrev_b32 v46, 6, v{t2}
    v_lshl_add_u32 v{vTO}, v{t1}, 3, v46
    v_add_u32 v{vTO}, s{sLW}, v{vTO}
    v_lshlrev_b32 v46, 5, v{t2}
    v_lshl_add_u32 v{vTOo}, v{t1}, 3, v46
    v_add_u32 v{vTOo}, s{sLW}, v{vTOo}
    ''')
    WD = {}; chunks = []
    for n in range(9):
        for m, sr in (('G', S_A), ('U', S_B)):
            d = wdest27(len(chunks)); WD[m, n] = d
            chunks.append(dict(srd=sr, vdma=f'v{vD}', soff=lambda i, n=n: f's_mov_b32 s{sT}, {(64*n + 16*i)*9216}', vtr=f'v{vTN}',
                               imm=lambda u, hf, sub: (32*hf + 4*sub)*64 + 32*u, dest=d))
    for pi in range(4):
        for kp in range(2):
            d = wdest27(len(chunks)); WD['D', pi, kp] = d
            chunks.append(dict(srd=S_C, vdma=f'v{vDO}', soff=lambda i, pi=pi, kp=kp: f's_mov_b32 s{sT}, {(64*kp + 16*i)*1152 + pi*256}',
                               vtr=f'v{vTO}', imm=lambda u, hf, sub: (32*hf + 2*sub)*64 + 32*u, dest=d))
    d = wdest27(len(chunks)); WD['Do'] = d
    chunks.append(dict(srd=S_C, vdma=f'v{vDOo}', soff=lambda i: f's_mov_b32 s{sT}, {32*i*1152}', vtr=f'v{vTOo}',
                       imm=lambda u, hf, sub: (64*u + 32*hf + 2*sub)*32, dest=d))
    load_chunks(k, chunks, sLW, sT, vL16, 56)
    spin_dbg(k, 'L_mod_rs', D_RS, 's_cmp_ge_u32 s33, 32')
    KY = 16
    k.I(f's_mov_b32 s{sT}, {WS_R:#x}\ns_mov_b32 s33, {WS_R + 4096:#x}')
    for i in range(8):
        k.I(f'buffer_load_dwordx4 {vr(KY+4*i,4)}, v{vL16}, {ws}, s{sT if i < 4 else 33} offen offset:{(i%4)*1024} sc1')
    k.I(f'''
    v_lshrrev_b32 v{t0}, 2, v{c}
    v_and_b32 v{t1}, 1, v{c}
    v_lshl_add_u32 v50, v{t0}, 1, v{t1}
    v_lshlrev_b32 v51, 1, v{g}
    v_add_u32 v52, 1, v51
    v_mov_b32 v{vSEL}, 0
    v_mov_b32 v{vK0}, 0
    v_mov_b32 v{vK1}, 0
    v_mov_b32 v53, 0
    s_mov_b32 s37, 0
    ''')
    k.wait(vm=0)
    k.label('L_mod_top'); k.reset()
    k.I(f'v_max3_u32 v48, v{KY}, v{KY+1}, v{KY+2}')
    for i in range(3, 31, 2): k.I(f'v_max3_u32 v48, v48, v{KY+i}, v{KY+i+1}')
    k.I(f'v_max_u32 v48, v48, v{KY+31}')
    for r in (8, 4, 2, 1): k.I(f'v_max_u32_dpp v48, v48, v48 row_ror:{r} row_mask:0xf bank_mask:0xf')
    xlane_g(k, 'v_max_u32', 48, 49)
    for i in range(32): k.I(f'v_cmp_ne_u32 vcc, v48, v{KY+i}\nv_cndmask_b32 v{KY+i}, 0, v{KY+i}, vcc')
    for dst, sel in ((vSEL, 50), (vK0, 51), (vK1, 52), (53, lane)):
        k.I(f'v_cmp_eq_u32 vcc, s37, v{sel}\nv_cndmask_b32 v{dst}, v{dst}, v48, vcc')
    k.I('s_add_u32 s37, s37, 1\ns_cmp_lt_u32 s37, 8\ns_cbranch_scc1 L_mod_top')
    k.I(f'''
    v_and_b32 v53, 0xffff, v53
    v_sub_u32 v53, 0xffff, v53
    v_lshrrev_b32 v{t0}, 3, v{lane}
    v_min_u32 v{t0}, 1, v{t0}
    v_lshlrev_b32 v{t0}, 30, v{t0}
    v_lshl_add_u32 v{t0}, v{lane}, 2, v{t0}
    s_mov_b32 s{sT}, {WS_SEL:#x}
    buffer_store_dword v53, v{t0}, {ws}, s{sT} offen sc1
    v_and_b32 v{vSEL}, 0xffff, v{vSEL}
    v_sub_u32 v{vSEL}, 0xffff, v{vSEL}
    v_mul_u32_u24 v{t0}, 1152, v{vSEL}
    v_lshl_add_u32 v{t0}, v{g}, 5, v{t0}
    v_and_b32 v{t1}, 2, v{lane}
    v_lshl_add_u32 v{t0}, v{t1}, 1, v{t0}
    ''')
    MAf = 16
    for n in range(9):
        for q in range(4): k.I(f'buffer_load_dword v{MAf+4*n+q}, v{t0}, {srd(S_D)}, 0 offen offset:{n*128 + q*8}')
    AC = dict(g0=52, g1=56, u0=60, u1=64)
    for a in AC.values(): k.I(f'v_mov_b64 {vr(a,2)}, 0\nv_mov_b64 {vr(a+2,2)}, 0')
    for n in range(9):
        for m in 'GU':
            for u in range(2):
                k.I(f'v_smfmac_f32_16x16x64_bf16 {vr(AC[m.lower()+str(u)],4)}, {vr(MAf+4*n,4)}, {fr(WD[m,n][u])}, v{vIDX}')
    for a in AC.values(): k.I(f'v_pk_add_f32 {vr(a,2)}, {vr(a,2)}, {vr(a+2,2)}')
    rnd_bf16(k, [(a, a+1) for a in AC.values()], 68)
    for u in range(2):
        ga, ua = AC[f'g{u}'], AC[f'u{u}']
        for j in range(2):
            sigmoid(k, 69, ga + j); k.I(f'v_mul_f32 v{ga+j}, v{ga+j}, v69')
        rnd_bf16(k, [(ga, ga+1)], 68)
        k.I(f'v_mul_f32 v{ga}, v{ga}, v{ua}\nv_mul_f32 v{ga+1}, v{ga+1}, v{ua+1}\nv_cvt_pk_bf16_f32 v{70+u}, v{ga}, v{ga+1}')
    k.I(f'''
    v_lshlrev_b32 v{t0}, 5, v{c}
    v_lshl_add_u32 v{t0}, v{g}, 3, v{t0}
    s_lshl_b32 s{sT}, s{sW}, 9
    v_add_u32 v{t0}, s{sT}, v{t0}
    ds_write_b64 v{t0}, v[70:71]
    v_lshlrev_b32 v{t1}, 8, v{g}
    v_lshl_add_u32 v{t1}, v{c}, 3, v{t1}
    ''')
    for a in range(16, 52, 2): k.I(f'v_mov_b64 {vr(a,2)}, 0')
    k.wait(lg=0)
    k.I('s_barrier')
    HA = 72
    for kp in range(2):
        for sub in range(2): k.I(f'ds_read_b64_tr_b16 {vr(HA+4*kp+2*sub,2)}, v{t1} offset:{kp*1024 + sub*128}')
    tiles = []
    for pi in range(4):
        for u in range(2):
            a = 16 + 4*(2*pi + u); tiles.append((a, (8*pi + u)*36*512))
            for kp in range(2): k.I(f'v_smfmac_f32_16x16x64_bf16 {vr(a,4)}, {vr(HA+4*kp,4)}, {fr(WD["D",pi,kp][u])}, v{vIDX}')
    for kp in range(2): k.I(f'v_smfmac_f32_16x16x64_bf16 v[48:51], {vr(HA+4*kp,4)}, {fr(WD["Do"][kp])}, v{vIDX}')
    k.I(f's_lshl_b32 s37, s{sM}, 9\ns_add_u32 s37, s37, {WS_MP:#x}\ns_mul_i32 s38, s{sW}, {2*36*512}\ns_add_u32 s38, s38, s37')
    for a, off in tiles:
        k.I(f'v_pk_add_f32 {vr(a,2)}, {vr(a,2)}, {vr(a+2,2)}\ns_add_u32 s{sT}, s38, {off}')
        k.I(f'buffer_store_dwordx2 {vr(a,2)}, v{vL8}, {ws}, s{sT} offen sc1')
    k.I(f'v_pk_add_f32 v[48:49], v[48:49], v[50:51]\ns_mul_i32 s{sT}, s{sW}, {36*512}\ns_add_u32 s{sT}, s{sT}, s37\ns_add_u32 s{sT}, s{sT}, {32*36*512}')
    k.I(f'buffer_store_dwordx2 v[48:49], v{vL8}, {ws}, s{sT} offen sc1')
    signal(k, srd(S_DBG), 0, D_MOD1, 68, vL0)
    k.I(f's_cmp_lg_u32 s{sW}, 0\ns_cbranch_scc1 L_exit')
    spin_dbg(k, 'L_mod_m1', D_MOD1, 's_cmp_ge_u32 s33, 36')
    k.I(f's_mul_i32 s{sT}, s{sM}, {36*512}\ns_add_u32 s{sT}, s{sT}, {WS_MP:#x}')
    for i in range(36):
        k.I(f'buffer_load_dwordx2 {vr(80+2*i,2)}, v{vL8}, {ws}, s{sT} offen offset:{(i%8)*512} sc1')
        if i % 8 == 7: k.I(f's_add_u32 s{sT}, s{sT}, 4096')
    for kk in (vK0, vK1):
        k.I(f'''
        v_and_b32 v{kk}, 0xffff0000, v{kk}
        v_ashrrev_i32 v16, 31, v{kk}
        v_not_b32 v16, v16
        v_or_b32 v16, 0x80000000, v16
        v_xor_b32 v{kk}, v{kk}, v16
        v_and_b32 v{kk}, 0xffff0000, v{kk}
        ''')
        sigmoid(k, kk, kk)
    rnd_bf16(k, [(vK0, vK1)], 16)
    for i in range(1, 36): k.I(f'v_pk_add_f32 v[80:81], v[80:81], {vr(80+2*i,2)}')
    rnd_bf16(k, [(80, 81)], 16)
    k.I(f'''
    v_mul_f32 v80, v80, v{vK0}
    v_mul_f32 v81, v81, v{vK1}
    v_cvt_pk_bf16_f32 v80, v80, v81
    v_mul_u32_u24 v{t0}, 2304, v{g}
    v_lshl_add_u32 v{t0}, v{c}, 1, v{t0}
    s_lshl_b32 s{sT}, s{sM}, 5
    s_add_u32 s{sT}, s{sT}, {WS_UPD:#x}
    buffer_store_short v80, v{t0}, {ws}, s{sT} offen sc1
    buffer_store_short_d16_hi v80, v{t0}, {ws}, s{sT} offen offset:1152 sc1
    s_waitcnt vmcnt(0)
    v_mov_b32 v16, 1
    buffer_atomic_add v16, v{vL0}, {srd(S_DBG)}, 0 offen offset:{D_MOD2}
    s_branch L_exit
    ''')

def dispatch_roles(k, cfg):
    k.I(f'''
    s_cmp_lt_u32 s{sPOOL}, 5
    s_cbranch_scc1 L_pa
    s_cmp_ge_u32 s{sPOOL}, 8
    s_cbranch_scc1 L_exit
    s_cmp_lt_u32 s{sSLOT}, 18
    s_cbranch_scc1 L_o
    s_cmp_lt_u32 s{sSLOT}, 30
    s_cbranch_scc1 L_mod
    s_branch L_init
    ''')
def bodies(k, cfg):
    for f in (role_init, role_pa, role_o, role_mod):
        k.raw('.p2align 6')
        f(k, cfg)
```

```python
import sys
from common import *
import chain, roles

KNAME = 'gated_mix__memory_aug_recurrent_mem_tr__moe_arch_mod__prompt_kernel'
HDR = open('gated_mix__memory_aug_recurrent_mem_tr__moe_arch_mod__prompt.s.ref').read().split('; Override launch')[0]

def dispatch(k, cfg):
    if cfg.get('stamps'): k.raw('  s_memtime s[98:99]')
    k.I('s_cmp_ge_u32 s2, 256')
    k.I('s_cbranch_scc1 L_exit')
    load_srds(k, [(S_WS, 'ws'), (S_DBG, 'dbg')])
    k.I(f'''
    v_lshrrev_b32 v1, 6, v0
    v_and_b32 v0, 63, v0
    v_readfirstlane_b32 s{sW}, v1
    s_getreg_b32 s33, hwreg(HW_REG_XCC_ID)
    s_and_b32 s33, s33, 7
    s_mov_b32 s{sBUD}, {BUDGET}
    v_mov_b32 v3, 0
    ''')
    if cfg.get('force_foreign'):
        k.I('s_lshr_b32 s33, s2, 5')
    k.I(f'''
    s_cmp_lg_u32 s{sW}, 0
    s_cbranch_scc1 L_claimed
    s_mov_b32 s34, 0
    ''')
    k.label('L_claim')
    k.I(f'''
    s_add_u32 s35, s33, s34
    s_and_b32 s35, s35, 7
    s_lshl_b32 s36, s35, 2
    v_lshl_add_u32 v1, v0, 8, s36
    v_mov_b32 v2, 1
    buffer_atomic_add v2, v1, {srd(S_DBG)}, 0 offen sc0
    v_readfirstlane_b32 s36, v2
    s_cmp_lt_u32 s36, 32
    s_cbranch_scc1 L_got
    s_add_u32 s34, s34, 1
    s_cmp_lt_u32 s34, 8
    s_cbranch_scc1 L_claim
    s_mov_b32 s35, 8
    s_mov_b32 s36, 0
    ''')
    k.label('L_got')
    k.I(f'''
    s_lshl_b32 s35, s35, 8
    s_or_b32 s35, s35, s36
    s_lshl_b32 s34, s34, 16
    s_or_b32 s35, s35, s34
    v_mov_b32 v2, s35
    ds_write_b32 v3, v2
    s_waitcnt lgkmcnt(0)
    ''')
    k.label('L_claimed')
    k.reset()
    k.I(f'''
    s_barrier
    ds_read_b32 v2, v3
    v_readfirstlane_b32 s33, v2
    s_and_b32 s{sSLOT}, s33, 0xff
    s_bfe_u32 s{sPOOL}, s33, 0x80008
    s_lshr_b32 s{sFOREIGN}, s33, 16
    s_min_u32 s{sFOREIGN}, s{sFOREIGN}, 1
    s_barrier
    ''')
    if cfg.get('force_foreign'): k.I(f's_mov_b32 s{sFOREIGN}, 1')

def gen(cfg):
    k = K()
    dispatch(k, cfg)
    k.I(f's_cmp_eq_u32 s{sPOOL}, 0')
    k.I('s_cbranch_scc1 L_chain')
    if cfg.get('roles'):
        cfg['roles'](k, cfg)
    k.label('L_exit')
    k.raw('  s_endpgm')
    k.reset()
    k.label('L_chain')
    chain.chain_prologue(k, cfg)
    for md, st in (('f', ''), ('s', 'sc1')):
        for w in range(4):
            k.raw('.p2align 6')
            chain.chain_loop(k, f'L_c{md}{w}', st, cfg, w)
    if cfg.get('bodies'):
        cfg['bodies'](k, cfg)
    head = HDR + f'''; @launch grid=(256,1,1) block=(256,1,1) lds=163840
.amdgcn_target "amdgcn-amd-amdhsa--gfx950"
.text
.globl {KNAME}
.p2align 8
.type {KNAME},@function
{KNAME}:
'''
    tail = f'''.section .rodata,"a"
.p2align 6
.amdhsa_kernel {KNAME}
  .amdhsa_next_free_vgpr 512
  .amdhsa_next_free_sgpr 102
  .amdhsa_accum_offset 256
  .amdhsa_group_segment_fixed_size 0
  .amdhsa_kernarg_size 128
  .amdhsa_user_sgpr_count 2
  .amdhsa_user_sgpr_kernarg_segment_ptr 1
  .amdhsa_system_sgpr_workgroup_id_x 1
.end_amdhsa_kernel
'''
    return head + k.text() + tail, k

DEFAULT = dict(d1=[256]*4, d2=[256]*4, roles=roles.dispatch_roles, bodies=roles.bodies)
OUT = 'gated_mix__memory_aug_recurrent_mem_tr__moe_arch_mod__prompt.s'
if __name__ == '__main__':
    txt, k = gen(DEFAULT)
    open(OUT, 'w').write(txt)
    print('lines', len(k.out), 'nops', k.nops_inserted)
```

```python
import re

REG_RE = re.compile(r'(?<![\w.])([vas])(?:\[(\d+):(\d+)\]|(\d+))(?![\w])')

def regs_of(tok):
    out = []
    t = tok.strip()
    if t in ('vcc',): return [('s', 'vcc')]
    if t in ('vcc_lo', 'vcc_hi'): return [('s', 'vcc')]
    if t in ('exec', 'exec_lo', 'exec_hi'): return [('s', 'exec')]
    if t == 'm0': return [('s', 'm0')]
    for m in REG_RE.finditer(t):
        k = m.group(1)
        if m.group(4) is not None: out.append((k, int(m.group(4))))
        else: out += [(k, i) for i in range(int(m.group(2)), int(m.group(3)) + 1)]
    return out

TRANS = ('v_exp_f32', 'v_log_f32', 'v_rcp_f32', 'v_rsq_f32', 'v_sqrt_f32', 'v_sin_f32', 'v_cos_f32', 'v_rcp_iflag_f32')

class Ins:
    __slots__ = ('text', 'op', 'dst', 'src', 'cls', 'dpp', 'srcC', 'srcAB', 'wide_store', 'lds_dma', 't', 'nocheck')
    def __init__(self, text, nocheck=False):
        self.text = text; self.nocheck = nocheck
        t = text.split(';')[0].strip()
        parts = t.split(None, 1)
        op = parts[0]; self.op = op
        rest = parts[1] if len(parts) > 1 else ''
        rest_nm = re.sub(r'\b(quad_perm|op_sel|op_sel_hi|neg_lo|neg_hi):\[[^\]]*\]', lambda m: m.group(1), rest)
        ops = [o.strip() for o in rest_nm.split(',')] if rest else []
        mods = ''
        if ops:
            sp = ops[-1].split(None, 1)
            if len(sp) > 1 and not ops[-1].startswith('hwreg') :
                ops[-1] = sp[0]; mods = sp[1]
        self.dpp = ('_dpp' in op) or ('row_' in mods) or ('quad_perm' in rest)
        self.srcC = []; self.srcAB = []; self.wide_store = []; self.lds_dma = False
        R = [regs_of(o) for o in ops]
        flat = lambda l: [x for y in l for x in y]
        dst = []; src = []
        if op.startswith('v_mfma'):
            self.cls = 'mfma'; dst = R[0]; self.srcAB = R[1] + R[2]; self.srcC = R[3]; src = flat(R[1:])
        elif op.startswith('v_smfmac'):
            self.cls = 'smfmac'; dst = R[0]; self.srcAB = R[1] + R[2] + R[3]; self.srcC = R[0]; src = flat(R)
        elif op.startswith('v_'):
            self.cls = 'valu'
            if op.startswith('v_cmpx'):
                dst = R[0] + [('s', 'exec')]; src = flat(R[1:])
            elif op.startswith('v_permlane') and 'swap' in op:
                dst = flat(R); src = flat(R)
            elif op.startswith(('v_add_co', 'v_sub_co', 'v_addc_co', 'v_subb_co', 'v_subrev_co')):
                dst = R[0] + R[1]; src = flat(R[2:])
            elif op.startswith(('v_fmac', 'v_pk_fmac', 'v_dot2c', 'v_writelane')) or self.dpp or 'd16' in op:
                dst = R[0]; src = flat(R)
            elif op == 'v_nop':
                pass
            else:
                dst = R[0]; src = flat(R[1:])
        elif op.startswith(('buffer_load', 'global_load')):
            self.cls = 'vmem'
            if re.search(r'\blds\b', mods) or '_lds_' in op:
                self.lds_dma = True; src = flat(R) + [('s', 'm0')]
            else:
                dst = R[0]; src = flat(R[1:])
                if 'd16' in op: src = flat(R)
        elif op.startswith(('buffer_store', 'global_store')):
            self.cls = 'vmem'; src = flat(R)
            if 'x3' in op or 'x4' in op:
                self.wide_store = R[0] if op.startswith('buffer') else R[1]
        elif op.startswith(('buffer_atomic', 'global_atomic')):
            self.cls = 'vmem'
            if 'sc0' in mods:
                dst = R[0]; src = flat(R) if op.startswith('buffer') else flat(R[1:])
            else: src = flat(R)
        elif op.startswith(('buffer_inv', 'buffer_wbl2')):
            self.cls = 'vmem'
        elif op.startswith('ds_'):
            self.cls = 'ds'
            if op.startswith(('ds_read', 'ds_bpermute', 'ds_permute', 'ds_swizzle')) or '_rtn' in op:
                dst = R[0]; src = flat(R[1:])
            else: src = flat(R)
        elif op.startswith(('s_load', 's_memtime', 's_memrealtime', 's_buffer_load')):
            self.cls = 'smem'; dst = R[0]; src = flat(R[1:])
        elif op.startswith('s_'):
            self.cls = 'salu'
            if op.startswith(('s_cmp', 's_bitcmp', 's_cbranch', 's_branch', 's_nop', 's_waitcnt', 's_barrier', 's_endpgm', 's_sleep', 's_setprio')):
                src = flat(R)
                if 'vcc' in op: src.append(('s', 'vcc'))
                if 'exec' in op: src.append(('s', 'exec'))
            else:
                dst = R[0] if R else []; src = flat(R[1:])
                if 'saveexec' in op: dst = dst + [('s', 'exec')]
        else:
            raise ValueError('unknown op ' + text)
        self.dst = dst; self.src = src

class K:
    FAKE = frozenset()
    masked = False
    def __init__(self):
        self.out = []
        self.reset()
        self.nops_inserted = 0
        self.log = []
        self.t_est = 0
        self.timed = []
        self.prof = None; self.ordn = 0; self.prof_text = []
    def reset(self):
        self.vm = []
        self.lg = []
        self.hist = []
        self.state = 0
        self.time = 0
        self.mfma_free = 0
        self.valu_free = 0
    def raw(self, s): self.out.append(s)
    def label(self, name): self.out.append(name + ':')
    def comment(self, s): self.out.append('  ; ' + s)
    def _emit(self, ins, states=1):
        t = self.time
        if ins.cls in ('mfma', 'smfmac'):
            t = max(t, self.mfma_free, self.valu_free)
            self.mfma_free = t + 16
            self.valu_free = t + (12 if ins.cls == 'smfmac' else 8)
        elif ins.cls == 'valu':
            t = max(t, self.valu_free)
        ins.t = t
        self.hist.append((ins, self.state, t))
        if len(self.hist) > 64: self.hist.pop(0)
        self.state += states
        self.time = t + 4 * states
        self.out.append('  ' + ins.text)
    def nop(self, n):
        while n > 0:
            k = min(n, 16)
            self._emit(Ins(f's_nop {k-1}'), k); n -= k
    def wait(self, vm=None, lg=None, explicit=True):
        parts = []
        if explicit and lg and self.prof is not None:
            n = 0; real = 0
            for d in reversed(self.lg):
                if d is not self.FAKE:
                    if real == lg: break
                    real += 1
                n += 1
            lg = min(n, 15)
        if vm is not None:
            parts.append(f'vmcnt({vm})'); self.vm = self.vm[len(self.vm) - vm:] if vm and vm < len(self.vm) else ([] if vm == 0 else self.vm)
        if lg is not None:
            parts.append(f'lgkmcnt({lg})'); self.lg = self.lg[len(self.lg) - lg:] if lg and lg < len(self.lg) else ([] if lg == 0 else self.lg)
        self._emit(Ins('s_waitcnt ' + ' '.join(parts)))
    def _issue_time(self, ins):
        t = self.time
        if ins.cls in ('mfma', 'smfmac'): t = max(t, self.mfma_free, self.valu_free)
        elif ins.cls == 'valu': t = max(t, self.valu_free)
        return t
    def I(self, text, nocheck=False):
        for line in text.strip().split('\n'):
            line = line.strip()
            if not line or line.startswith(';'): continue
            if line.endswith(':'): self.label(line[:-1]); continue
            self._one(line, nocheck)
    def _one(self, text, nocheck):
        ins = Ins(text, nocheck)
        if ins.op == 's_nop':
            self._emit(ins, int(text.split()[1]) + 1); return
        if ins.op == 's_waitcnt':
            vm = re.search(r'vmcnt\((\d+)\)', text); lg = re.search(r'lgkmcnt\((\d+)\)', text)
            self.wait(int(vm.group(1)) if vm else None, int(lg.group(1)) if lg else None); return
        touched = set(ins.src) | set(ins.dst)
        if text.startswith(('s_mov_b64 exec', 's_mov_b32 exec')): self.masked = '-1' not in text
        if not nocheck:
            need_vm = None
            for i, d in enumerate(self.vm):
                if d & touched: need_vm = len(self.vm) - 1 - i
            need_lg = None
            for i, d in enumerate(self.lg):
                if d & touched: need_lg = len(self.lg) - 1 - i
            if need_lg is not None and any(('smem',) in d for d in self.lg): need_lg = 0
            if need_vm is not None: need_vm = min(need_vm, 63)
            if need_lg is not None: need_lg = min(need_lg, 15)
            if need_vm is not None or need_lg is not None: self.wait(need_vm, need_lg, False)
        need = 0
        S = set(ins.src); D = set(ins.dst)
        tnow = self._issue_time(ins)
        need_t = 0
        for (p, st, tp) in self.hist:
            dist = self.state - st - 1
            pd = set(p.dst)
            def req(n):
                nonlocal need
                need = max(need, n - dist)
            if p.cls in ('mfma', 'smfmac'):
                hit = False
                if ins.cls in ('mfma', 'smfmac'):
                    if pd & set(ins.srcAB): hit = True
                    c = ins.srcC
                    if pd & set(c) and list(p.dst) != list(c): hit = True
                    if pd & D and list(p.dst) != list(c): hit = True
                elif ins.cls in ('valu', 'vmem', 'ds'):
                    if pd & (S | D): hit = True
                if hit: need_t = max(need_t, tp + 36 - tnow)
                if ins.cls in ('mfma', 'smfmac') and pd & set(ins.srcC) and p.op != ins.op:
                    need_t = max(need_t, tp + 28 - tnow)
                if ins.cls == 'valu' and set(p.srcC) & D: need_t = max(need_t, tp + 16 - tnow)
            if p.cls == 'valu':
                pv = {r for r in pd if r[0] in 'va'}
                ps = {r for r in pd if r[0] == 's'}
                if ins.cls in ('mfma', 'smfmac'):
                    if pv & S: req(2)
                    if ('s', 'exec') in ps: req(4)
                if ins.cls == 'valu':
                    if ins.dpp and pv & S: req(2)
                    if ins.dpp and ('s', 'exec') in ps: req(5)
                    if ins.op.startswith('v_permlane') and pv & S: req(2)
                    if ins.op.startswith('v_permlane') and ('s', 'exec') in ps: req(4)
                    if ins.op.startswith(('v_readlane', 'v_readfirstlane')) and pv & S: req(1)
                    if ins.op.startswith(('v_readlane', 'v_readfirstlane', 'v_writelane')) and ('s', 'exec') in ps: req(4)
                    if p.op.startswith(TRANS) and pv & S and not ins.op.startswith(TRANS): req(1)
                    if p.op.startswith(TRANS) and pv & S and ins.op.startswith(TRANS): req(1)
                    if ps & S:
                        req(4 if ins.op.startswith(('v_readlane', 'v_writelane')) else 2)
                    if 'sdwa' in p.op or 'op_sel' in p.text and not p.op.startswith('v_pk'):
                        if pv & (S | D): req(1)
                if ins.cls == 'vmem' and (ps - {('s', 'exec')}) & S: req(5)
                if ins.cls in ('salu',) and (ps & S) and not ins.op.startswith('s_cbranch'): req(1)
            if p.cls == 'vmem' and p.wide_store and set(p.wide_store) & D:
                req(2 if ins.cls in ('valu', 'mfma', 'smfmac') else 1)
            if p.cls == 'salu' and ('s', 'm0') in pd and ins.lds_dma: req(1)
        if need_t > 0: need = max(need, -(-(need_t + (tnow - self.time)) // 4))
        if need > 0:
            self.nops_inserted += need
            self.log.append((len(self.out), need, text))
            self.nop(need)
        self._emit(ins)
        if ins.cls == 'vmem': self.vm.append(set(ins.dst))
        if ins.cls == 'ds': self.lg.append(set(ins.dst))
        if ins.cls == 'smem': self.lg.append(set(ins.dst) | {('smem',)})
        if self.timed and self.time >= self.timed[0][0] and 'exec' not in text and not self.masked:
            _, tx = self.timed.pop(0); self._one(tx, False)
        if self.prof is not None:
            self.prof_text.append(text)
            if self.ordn in self.prof:
                r = self.prof[self.ordn]
                self.out.append(f'  s_memtime s[{r}:{r+1}]'); self.lg += [self.FAKE, self.FAKE]
            self.ordn += 1
    def text(self): return '\n'.join(self.out) + '\n'

def vr(a, n=1, k='v'):
    return f'{k}{a}' if n == 1 else f'{k}[{a}:{a+n-1}]'
```

```python
from common import *
import numpy as np
def np_f32_bits(x): return int(np.float32(x).view(np.uint32))

L_MA, L_S, L_R5, L_X2, L_Z, L_W = 0, 8192, 12288, 13312, 15360, 16384
vL16, vIDX, vLW, vPST, vPSO, vRST, vLAND, vX1W, vX1R, vX2W, vTM, vNEG1 = range(12)
RD = 12
ACC = dict(q0=16, q1=20, k0=24, k1=28, v0=64, v1=68)
VX = 32
MA = [40, 44, 48, 52]
WR = [56, 64]
KX = 72
sH, sSTEP, sLW, sT, sEX = 34, 35, 36, 37, 38
sP0, sPU, sPX = 40, 44, 45
sEXM = 46
sMC, sMU, sMX = 48, 49, 50
sMRU, sMRX = 51, 52
sU64, sX64 = 53, 54
sKVX, sKVXN, sMHU, sFKVX, sMHX = 55, 56, 57, 58, 59
sMSK = 60
sC = 70
sSY = 71
sVAL = 72
sMCW, sUM = 74, 75
sXM = 77
vRSX = vLAND
sFLG = 76
sRT = 39
NSTEP = 63

LDS_CH = ['Q0', 'Q2', 'Q4', 'Q6', 'Q8', 'O00', 'O11', 'O31', 'Oo']
RING0 = (27 % 8)

def weight_map():
    names = [f'{m}{n}' for n in range(9) for m in 'QKV'] + [f'O{i}{kp}' for i in range(4) for kp in range(2)] + ['Oo']
    regch = [n for n in names if n not in LDS_CH]
    assert len(regch) == 27
    dest = {}
    for i, n in enumerate(regch):
        if i < 16: dest[n] = [('a', 16*i), ('a', 16*i + 8)]
        else: dest[n] = [('v', 80 + 16*(i-16)), ('v', 88 + 16*(i-16))]
    return regch, dest
REGCH, WDEST = weight_map()

def W(name, u):
    kind, base = WDEST[name][u]; return vr(base, 8, kind)
def lds_frag_reads(name, u, reg, w):
    if name == 'Oo': base = 0 if w % 2 == 0 else 61440
    else: base = ((RING0 + LDS_CH.index(name)) % 8)*8192 + (4096 if w % 2 == 0 else 0)
    return [f'ds_read_b128 {vr(reg + 4*hf, 4)}, v{vLW} offset:{base + u*2048 + hf*1024}' for hf in range(2)]
def SM(acc, A, B): return f'v_smfmac_f32_16x16x64_bf16 {vr(acc,4)}, {vr(A,4)}, {B}, v{vIDX}'

def chain_prologue(k, cfg):
    k.comment('==== chain prologue')
    ws = srd(S_WS)
    S_M0 = 60
    make_srds(k, [(S_A, 'Wq'), (S_B, 'Wk'), (S_C, 'Wv'), (S_D, 'Wo'), (S_M0, 'mem0')])
    lane, c, g, t0, t1, t2 = 79, 78, 77, 76, 75, 74
    vD, vDO, vDOo, vTN, vTO, vTOo, vWB = 40, 41, 42, 43, 44, 45, 47
    sPB, sOB = 39, 78
    k.I(f'''
    s_mov_b32 s{sH}, s{sSLOT}
    v_mov_b32 v{lane}, v0
    v_and_b32 v{c}, 15, v{lane}
    v_lshrrev_b32 v{g}, 4, v{lane}
    v_lshlrev_b32 v{vL16}, 4, v{lane}
    s_lshr_b32 s{sT}, s{sW}, 1
    s_mul_i32 s{sPB}, s{sT}, 73728
    s_add_u32 s{sPB}, s{sPB}, {L_W + 4096}
    s_and_b32 s33, s{sW}, 1
    s_lshl_b32 s{sLW}, s33, 12
    s_add_u32 s{sLW}, s{sLW}, s{sPB}
    s_lshl_b32 s33, s33, 5
    v_lshrrev_b32 v{t0}, 3, v{lane}
    v_add_u32 v{t0}, s33, v{t0}
    v_and_b32 v{t1}, 7, v{lane}
    v_lshlrev_b32 v{t1}, 4, v{t1}
    s_lshl_b32 s{sT}, s{sT}, 7
    v_add_u32 v{t1}, s{sT}, v{t1}
    v_lshl_add_u32 v{vD}, v{t0}, 13, v{t1}
    s_lshl_b32 s33, s{sH}, 8
    v_add_u32 v{vD}, s33, v{vD}
    v_mul_u32_u24 v{vDO}, 1152, v{t0}
    v_add_u32 v{vDO}, v{vDO}, v{t1}
    s_mul_i32 s{sT}, s{sH}, 147456
    v_add_u32 v{vDO}, s{sT}, v{vDO}
    ; odd: (l>>1)*1152 + (l&1)*16 + h*147456 + 1024 + w*32
    v_lshrrev_b32 v{t0}, 1, v{lane}
    v_mul_u32_u24 v{vDOo}, 1152, v{t0}
    v_and_b32 v{t1}, 1, v{lane}
    v_lshl_add_u32 v{vDOo}, v{t1}, 4, v{vDOo}
    s_lshl_b32 s33, s{sW}, 5
    s_add_u32 s{sT}, s{sT}, s33
    s_add_u32 s{sT}, s{sT}, 1024
    v_add_u32 v{vDOo}, s{sT}, v{vDOo}
    s_and_b32 s33, s{sW}, 1
    s_mul_i32 s{sOB}, s33, {65536 + 4096}
    s_add_u32 s{sOB}, s{sOB}, s{sPB}
    s_sub_u32 s{sOB}, s{sOB}, 4096
    s_lshl_b32 s{sU64}, s{sW}, 5
    s_add_u32 s{sU64}, s{sU64}, s{sH}
    s_lshl_b32 s{sU64}, s{sU64}, 6
    s_lshr_b32 s{sX64}, s{sH}, 1
    s_add_u32 s{sX64}, s{sX64}, 128
    s_lshl_b32 s{sX64}, s{sX64}, 6
    s_and_b32 s{sEX}, s{sH}, 1
    v_mul_u32_u24 v{t0}, 1152, v{g}
    v_bfe_u32 v{t1}, v{c}, 1, 1
    v_lshl_add_u32 v{t0}, v{t1}, 4, v{t0}
    v_and_b32 v{t1}, 1, v{c}
    v_lshl_add_u32 v{t0}, v{t1}, 2, v{t0}
    ''')
    for (su, r) in ((sU64, RD), (sX64, RD + 2)):
        k.I(f'''
        s_bfe_u32 s{sT}, s{su}, 0x20006
        s_mul_i32 s{sT}, s{sT}, 2304
        s_lshr_b32 s33, s{su}, 8
        s_lshl_b32 s33, s33, 5
        s_add_u32 s{sT}, s{sT}, s33
        buffer_load_dword v{r}, v{t0}, {srd(S_M0)}, s{sT} offen
        buffer_load_dword v{r+1}, v{t0}, {srd(S_M0)}, s{sT} offen offset:8
        ''')
    def marks(c):
        lm = cfg.get('lmarks')
        if lm and c in lm: k.raw(f'  s_memtime s[{80+2*lm.index(c)}:{81+2*lm.index(c)}]')
    stages = REGCH + LDS_CH[:8]
    def dma(ci):
        name = stages[ci]
        for i in range(4):
            k.I(f's_add_u32 m0, s{sLW}, {(ci % 8)*8192 + i*1024}')
            if name[0] in 'QKV':
                k.I(f's_mov_b32 s{sT}, {(int(name[1])*64 + 8*i)*8192:#x}')
                k.I(f"buffer_load_dwordx4 v{vD}, {srd(dict(Q=S_A, K=S_B, V=S_C)[name[0]])}, s{sT} offen lds")
            else:
                k.I(f's_mov_b32 s{sT}, {(64*int(name[2]) + 8*i)*1152 + int(name[1])*256}')
                k.I(f"buffer_load_dwordx4 v{vDO}, {srd(S_D)}, s{sT} offen lds")
    marks(-2)
    for ci in range(3): dma(ci)
    k.I(f'''
    v_mov_b32 v{vNEG1}, -1
    v_mov_b32 v{vIDX}, 0x4444
    v_mov_b32 v{t0}, 0xeeee
    v_and_b32 v{t1}, 2, v{lane}
    v_cmp_ne_u32 vcc, 0, v{t1}
    v_cndmask_b32 v{vIDX}, v{vIDX}, v{t0}, vcc
    v_lshrrev_b32 v{t0}, 3, v{c}
    v_lshl_add_u32 v{t0}, v{t0}, 2, v{g}
    v_lshlrev_b32 v{t0}, 11, v{t0}
    v_and_b32 v{t1}, 7, v{c}
    v_lshl_add_u32 v{vPST}, v{t1}, 3, v{t0}
    s_lshl_b32 s{sT}, s{sW}, 14
    s_lshl_b32 s33, s{sH}, 6
    s_add_u32 s{sT}, s{sT}, s33
    v_add_u32 v{vPST}, s{sT}, v{vPST}
    v_and_b32 v{t0}, 8, v{c}
    v_and_b32 v{t1}, 3, v{c}
    v_lshl_add_u32 v{t0}, v{t1}, 1, v{t0}
    v_bfe_u32 v{t1}, v{c}, 2, 1
    v_add_u32 v{t0}, v{t0}, v{t1}
    v_lshlrev_b32 v{t0}, 2, v{t0}
    v_lshl_add_u32 v{vPSO}, v{g}, 11, v{t0}
    s_lshl_b32 s{sT}, s{sW}, 13
    s_add_u32 s{sT}, s{sT}, s33
    s_add_u32 s{sT}, s{sT}, {128*2048}
    v_add_u32 v{vPSO}, s{sT}, v{vPSO}
    v_and_b32 v{t0}, 1, v{c}
    v_lshl_add_u32 v{t0}, v{t0}, 1, v{g}
    v_lshlrev_b32 v{t0}, 4, v{t0}
    v_bfe_u32 v{t1}, v{c}, 1, 1
    v_lshl_add_u32 v{vRST}, v{t1}, 3, v{t0}
    v_lshrrev_b32 v{t0}, 2, v{c}
    v_mul_u32_u24 v{t0}, 3072, v{t0}
    v_add_u32 v{vRSX}, v{t0}, v{vRST}
    v_and_b32 v{t0}, 0x2c, v{lane}
    v_mov_b32 v{t1}, {OOB:#x}
    v_cmp_eq_u32 vcc, 0, v{t0}
    v_cndmask_b32 v{vRST}, v{t1}, v{vRST}, vcc
    v_cmp_gt_u32 vcc, 32, v{lane}
    v_cndmask_b32 v{vRSX}, v{t1}, v{vRSX}, vcc
    v_and_b32 v{t0}, 3, v{lane}
    v_cmp_eq_u32 vcc, 0, v{t0}
    v_cndmask_b32 v{vTM}, 0, 1, vcc
    v_lshlrev_b32 v48, 5, v{lane}
    v_lshlrev_b32 v{t0}, 3, v{lane}
    v_and_b32 v{t1}, 32, v{lane}
    v_lshlrev_b32 v{t1}, 1, v{t1}
    v_xor_b32 v{vX1W}, v{t0}, v{t1}
    v_lshrrev_b32 v{t0}, 2, v{lane}
    v_lshlrev_b32 v{t0}, 3, v{t0}
    v_and_b32 v{t1}, 2, v{lane}
    v_lshlrev_b32 v{t1}, 5, v{t1}
    v_xor_b32 v{t0}, v{t0}, v{t1}
    v_and_b32 v{t1}, 3, v{lane}
    v_lshl_add_u32 v{vX1R}, v{t1}, 7, v{t0}
    v_mov_b64 v[16:17], 0
    v_mov_b64 v[18:19], 0
    ds_write_b128 v{vL16}, v[16:19] offset:{L_Z}
    v_mov_b32 v{t1}, {LDS_OOB:#x}
    v_and_b32 v{t0}, 13, v{c}
    v_and_b32 v{t2}, 1, v{g}
    v_lshl_add_u32 v{t0}, v{t2}, 1, v{t0}
    v_lshrrev_b32 v{t2}, 1, v{g}
    v_lshl_add_u32 v{t0}, v{t2}, 4, v{t0}
    v_lshlrev_b32 v{vX2W}, 4, v{t0}
    v_and_b32 v{t0}, 2, v{c}
    v_cmp_ne_u32 vcc, 0, v{t0}
    v_cndmask_b32 v{vX2W}, v{t1}, v{vX2W}, vcc
    s_mov_b32 s{sC}, {np_f32_bits(128**-0.5 * 1.4426950408889634):#x}
    ''')
    k.I(f'''
    s_and_b32 s33, s{sW}, 1
    s_lshl_b32 s{sT}, s33, 13
    s_add_u32 s{sT}, s{sT}, s{sPB}
    s_sub_u32 s{sT}, s{sT}, 4096
    v_add_u32 v{vLW}, s{sT}, v{vL16}
    v_add_u32 v{vWB}, s{sLW}, v{vL16}
    s_lshl_b32 s33, s33, 6
    s_add_u32 s33, s33, s{sPB}
    v_lshrrev_b32 v{t0}, 2, v{c}
    v_and_b32 v{t1}, 3, v{c}
    v_lshl_add_u32 v{t2}, v{g}, 3, v{t0}
    v_lshlrev_b32 v{t2}, 7, v{t2}
    v_lshl_add_u32 v{vTN}, v{t1}, 3, v{t2}
    v_add_u32 v{vTN}, s33, v{vTN}
    v_and_b32 v{t2}, 1, v{g}
    v_lshlrev_b32 v{t2}, 4, v{t2}
    v_lshrrev_b32 v46, 1, v{g}
    v_lshl_add_u32 v{t2}, v46, 3, v{t2}
    v_lshrrev_b32 v46, 1, v{t0}
    v_lshl_add_u32 v{t2}, v46, 2, v{t2}
    v_and_b32 v46, 1, v{t0}
    v_add_u32 v{t2}, v{t2}, v46
    v_lshlrev_b32 v46, 7, v{t2}
    v_lshl_add_u32 v{vTO}, v{t1}, 4, v46
    v_add_u32 v{vTO}, s33, v{vTO}
    v_lshlrev_b32 v46, 5, v{t2}
    v_lshl_add_u32 v{vTOo}, v{t1}, 3, v46
    v_add_u32 v{vTOo}, s{sOB}, v{vTOo}
    ''')
    for r in range(RD, RD + 4): k.I(f'v_min_u32 v{r}, -2, v{r}')
    set_mask(k, sMSK, lambda l: ((l & 15) >> 2) & 1)
    for n in range(4):
        set_mask(k, sMSK + 2 + 2*n, lambda l: (l & 15) < 8 and n == 2*(l & 1) + ((l >> 1) & 1))
    k.I(f'''
    s_lshl_b32 s{sUM}, s{sW}, 10
    s_add_u32 s{sUM}, s{sUM}, s{sU64}
    s_sub_u32 s{sXM}, s{sX64}, {128*64 - 2048}
    s_lshl_b32 s{sT}, s{sH}, 2
    s_add_u32 s{sT}, s{sT}, {WS_SY:#x}
    v_lshlrev_b32 v49, 7, v{lane}
    buffer_store_dword v{vNEG1}, v49, {ws}, s{sT} offen sc1
    ''')
    for (su, sm, r, va) in ((sU64, sUM, RD, vRST), (sX64, sXM, RD + 2, vRSX)):
        k.I(f's_add_u32 s{sT}, s{sm}, {WS_M}')
        k.I(f'buffer_store_dwordx2 {vr(r,2)}, v{va}, {ws}, s{sT} offen sc1')
        for sl in (1, 2):
            k.I(f's_add_u32 s{sT}, s{sT}, {MR_SLOT}')
            k.I(f'buffer_store_dword v{vNEG1}, v{va}, {ws}, s{sT} offen sc1')
        k.I(f's_lshl_b32 s{sT}, s{su}, 5')
        k.I(f'buffer_store_dword v{vNEG1}, v48, {ws}, s{sT} offen sc1')
    for i in range(4):
        k.I(f's_add_u32 m0, s{sOB}, {i*1024}')
        k.I(f's_mov_b32 s{sT}, {32*i*1152}')
        k.I(f"buffer_load_dwordx4 v{vDOo}, {srd(S_D)}, s{sT} offen lds")
    for ci in range(3, 8): dma(ci)
    marks(-1)
    issued = 8; n = len(stages); TMP = 56
    def writeback(ci):
        for q in range(4): k.I(f'ds_write_b128 v{vWB}, {vr(TMP + 4*q, 4)} offset:{(ci % 8)*8192 + q*1024}')
    for ci in range(n):
        name = stages[ci]
        k.wait(vm=4*(issued - 1 - ci) + (13 if ci < 3 else 0))
        k.I('s_barrier')
        marks(ci)
        if ci == 4:
            k.I(f'''
            s_lshl_b32 s{sT}, s{sFOREIGN}, 16
            s_add_u32 s{sT}, s{sT}, 1
            v_mov_b32 v16, s{sT}
            s_lshl_b32 s{sT}, s{sW}, 6
            v_add_u32 v17, s{sT}, v{lane}
            v_lshlrev_b32 v17, 8, v17
            ''')
            k.raw(f'  buffer_atomic_add v16, v17, {srd(S_DBG)}, 0 offen offset:{D_CHAIN}')
            for u in range(2):
                for hf in range(2):
                    for sub in range(2):
                        k.I(f'ds_read_b64_tr_b16 {vr(TMP + 8*u + 4*hf + 2*sub, 2)}, v{vTOo} offset:{(64*u + 32*hf + 2*sub)*32}')
            k.I(f'v_add_u32 v16, s{sOB}, v{vL16}')
            k.wait(lg=0)
            for q in range(4): k.I(f'ds_write_b128 v16, {vr(TMP + 4*q, 4)} offset:{q*1024}')
        if ci >= 1:
            if issued < n: dma(issued); issued += 1
            if stages[ci - 1] in LDS_CH: writeback(ci - 1)
        dest = WDEST.get(name) or [('v', TMP), ('v', TMP + 8)]
        for u in range(2):
            for hf in range(2):
                for sub in range(2):
                    if name[0] in 'QKV': vt, imm = vTN, (32*hf + 4*sub)*128 + 32*u
                    else: vt, imm = vTO, (32*hf + 2*sub)*128 + 8*u
                    k.I(f"ds_read_b64_tr_b16 {frag_reg(dest[u], 4*hf + 2*sub, 2)}, v{vt} offset:{(ci % 8)*8192 + imm}")
        k.wait(lg=0)
    k.I('s_barrier')
    writeback(n - 1)
    k.I(f'v_mov_b32 v16, 1')
    k.raw(f'  buffer_atomic_add v16, v17, {srd(S_DBG)}, 0 offen offset:{D_LOADED}')
    k.wait(vm=0, lg=0)
    if cfg.get('lmarks'):
        for i in range(8): k.raw(f'  s_sub_u32 s{12+i}, s{80+2*i}, s98')
    stamp(k, cfg, 'loaded')
    set_mask(k, sVAL, lambda l: l & 2)
    k.I(f'''
    s_mov_b32 s{S_C}, s{S_WS}
    s_mov_b32 s{S_C+1}, s{S_WS+1}
    s_cmp_eq_u32 s{sEX}, 0
    s_cselect_b32 s{S_C+2}, {WS_SIZE:#x}, 0
    s_cselect_b64 s[{sEXM}:{sEXM+1}], -1, 0
    s_mov_b32 s{S_C+3}, 0x20000
    ''')
    spin_dbg(k, 'L_c_init', D_INIT, f's_cmp_ge_u32 s33, {N_INIT}')
    spin_dbg(k, 'L_c_bar', D_CHAIN, f's_and_b32 s{sT}, s33, 0xffff\ns_cmp_ge_u32 s{sT}, 32')
    k.I(f's_lshr_b32 s{sFOREIGN}, s33, 16')
    k.I(f'''
    s_mov_b32 s{sSTEP}, 0
    s_mov_b32 s{sSY}, {WS_SY:#x}
    s_lshl_b32 s{sEX}, s{sH}, 2
    s_add_u32 s{sEX}, s{sEX}, s{sSY}
    s_and_b32 s{sT}, s{sH}, {cfg.get('syr', 8) - 1}
    s_lshl_b32 s{sT}, s{sT}, 10
    s_add_u32 s{sSY}, s{sSY}, s{sT}
    s_mov_b32 s{sMC}, {WS_M}
    s_mul_i32 s{sT}, s{sW}, 3072
    s_add_u32 s{sMCW}, s{sT}, {WS_M}
    s_lshl_b32 s{sKVX}, s{sH}, 14
    s_lshl_b32 s{sT}, s{sW}, 12
    s_add_u32 s{sKVX}, s{sKVX}, s{sT}
    s_add_u32 s{sKVX}, s{sKVX}, {WS_KVX:#x}
    s_lshl_b32 s{sFKVX}, s{sH}, 8
    s_add_u32 s{sFKVX}, s{sFKVX}, {F_KVX:#x}
    s_add_u32 s{sMHU}, s{sU64}, {WS_MH:#x}
    s_add_u32 s{sMHX}, s{sX64}, {WS_MH:#x}
    s_mov_b32 s{sP0}, 0
    s_mov_b32 s{sP0+1}, 0x10000
    s_mov_b32 s{sP0+2}, 0x20000
    s_mov_b32 s{sP0+3}, 0x30000
    s_lshl_b32 s{sPU}, s{sU64}, 5
    s_lshl_b32 s{sPX}, s{sX64}, 5
    s_mov_b32 s{sKVXN}, {0 if cfg.get("samekv") else 524288}
    s_add_u32 s{sMRU}, s{sUM}, {WS_M + 2*MR_SLOT}
    s_add_u32 s{sMRX}, s{sXM}, {WS_M + 2*MR_SLOT}
    ''')
    k.label('L_c_kv0')
    k.I(f'''
    buffer_load_dword v16, off, {ws}, s{sFKVX} sc1
    s_sub_u32 s{sBUD}, s{sBUD}, 1
    s_cbranch_scc1 L_exit
    v_cmp_eq_u32 vcc, 0, v16
    s_cbranch_vccnz L_c_kv0
    ''')
    k.reset()
    k.I(f's_add_u32 s{sFKVX}, s{sFKVX}, 4')
    k.I(f's_mov_b32 s{sFLG}, 0')
    for a in range(16, 32, 2): k.I(f'v_mov_b64 {vr(a,2)}, 0')
    stamp(k, cfg, 8)
    if cfg.get('stamps'):
        k.raw('  s_memrealtime s[100:101]')
        if not cfg.get('lmarks'):
            for i in range(8): k.raw(f'  s_mov_b32 s{12+i}, 0')
    k.I(f's_cmp_lg_u32 s{sFOREIGN}, 0')
    k.I('s_cbranch_scc1 L_c_slow')
    for md in ('f', 's'):
        if md == 's': k.label('L_c_slow')
        for w in range(3):
            k.I(f's_cmp_eq_u32 s{sW}, {w}'); k.I(f's_cbranch_scc1 L_c{md}{w}_entry')
        k.I(f's_branch L_c{md}3_entry')

DEFMARKS = ['A', 'B', 'C', 'D', 'E', 'F', 'hop1', 'hop2']
def stamp(k, cfg, i):
    if not cfg.get('stamps'): return
    if i == 'loaded': k.raw('  s_memtime s[26:27]'); return
    if isinstance(i, str):
        if cfg['stamps'] != 1: return
        m = cfg.get('marks', DEFMARKS)
        if i not in m: return
        i = m.index(i)
    k.raw(f'  s_memtime s[{80+2*i}:{81+2*i}]')

TRACE = ['h2i', 'h2ok', 'bar1', 'std', 'h1i', 'h1d', 'red', 'syd']
def tr(k, cfg, nm):
    if cfg.get('trace'):
        i = TRACE.index(nm); k.raw(f'  s_memtime s[{80+2*i}:{81+2*i}]')
        if nm == 'std': k.raw('  s_memrealtime s[96:97]')

def chain_loop(k, P, st, cfg, w):
    ws = srd(S_WS)
    d1, d2 = cfg['d1'][w], cfg['d2'][w]
    EXW = (w == 0)
    NP, SYR = cfg.get('np', 5), cfg.get('syr', 8)
    PA_, PV_, PF_, PX_, PR = 32, 33, 34, 35, [36, 37, 38, 39, 72, 73, 74, 75]
    k.reset()
    k.label(P + '_top')
    PROFREGS = list(range(80, 96, 2)) + list(range(12, 20, 2)) + [24, 26]
    if cfg.get('prof') is not None:
        k.prof = dict(zip(cfg['prof'], PROFREGS)); k.ordn = 0; k.prof_text = []
    opt = cfg.get('opt') if st == '' else None
    PW_ = 76
    if opt:
        k.I(f's_or_b32 s{sT}, vcc_lo, s{sRT}')
        if not cfg.get('nocomm'): k.I(f's_cbranch_scc1 {P}_sy')
    else:
        k.raw(f'  s_waitcnt vmcnt({NP-1})')
        k.I(f'v_cmp_gt_i32 vcc, v{PV_}, v{PR[0]}')
        if not cfg.get('nocomm'): k.I(f's_cbranch_vccnz {P}_fl')
    k.label(P + '_h2')
    tr(k, cfg, 'syd')
    stamp(k, cfg, 'h2')
    k.I(f'''
    buffer_load_dwordx4 {vr(MA[0],4)}, v{vL16}, {ws}, s{sMCW} offen sc1
    s_nop {cfg.get('mg', (0, 0))[0]}
    buffer_load_dwordx4 {vr(MA[1],4)}, v{vL16}, {ws}, s{sMCW} offen offset:1024 sc1
    s_nop {cfg.get('mg', (0, 0))[1]}
    buffer_load_dwordx4 {vr(MA[2],4)}, v{vL16}, {ws}, s{sMCW} offen offset:2048 sc1
    ''')
    tr(k, cfg, 'h2i')
    tq = MA[3]
    k.label(P + '_h2w')
    k.wait(vm=2, lg=0)
    def acc_stamps():
        if cfg.get('nocomm'): k.I('s_barrier')
        if cfg.get('stamps') == 1:
            k.raw('  s_memtime s[78:79]\n  s_waitcnt lgkmcnt(0)\n  s_cmp_lt_u32 s%d, 2\n  s_cbranch_scc1 %s_noacc' % (sSTEP, P))
            for i in range(8):
                k.raw(f'  s_sub_u32 s33, s{82+2*i if i < 7 else 78}, s{80+2*i}\n  s_add_u32 s{12+i}, s{12+i}, s33')
            k.label(P + '_noacc')
        stamp(k, cfg, 'A')
    def B(name, u): return vr(WR[u], 8) if name in LDS_CH else W(name, u)
    T = [2*w, 2*w + 1, 8] + [2*(w ^ m) + x for m in (1, 2, 3) for x in (1, 0)]
    R = [MA[0], MA[1], MA[2], MA[3], MA[0], MA[1], MA[3], MA[0], MA[1]]
    def sm(m, u, i): return SM(ACC[m.lower() + str(u)], R[i], B(f'{m}{T[i]}', u))
    mf = []
    for i in range(7):
        for m in 'QK':
            for u in range(2): mf.append(sm(m, u, i))
    mf += [sm('Q', 0, 7), sm('Q', 1, 7), sm('Q', 0, 8), sm('Q', 1, 8), sm('K', 0, 7), sm('K', 0, 8), sm('K', 1, 7), sm('K', 1, 8)]
    fill = {}
    def add(pos, *ins): fill.setdefault(pos, []).extend(ins)
    def mread(i, reg): return f'ds_read_b128 {vr(reg,4)}, v{vL16} offset:{L_MA + T[i]*1024}'
    def wreads(nm, ps, buf=WR):
        r = lds_frag_reads(nm, 0, buf[0], w) + lds_frag_reads(nm, 1, buf[1], w)
        for p, x in zip(ps, r): add(p, x)
    pb = cfg.get('pb', 9)
    p1, p2 = cfg.get('p1', 3), cfg.get('p2', 6)
    acc_stamps(); tr(k, cfg, 'h2ok')
    add(0, f'ds_write_b128 v{vL16}, {vr(MA[0],4)} offset:{L_MA + T[0]*1024}', f'v_max_u32 v{tq}, v{MA[0]}, v{MA[0]+2}')
    add(p1, f'ds_write_b128 v{vL16}, {vr(MA[1],4)} offset:{L_MA + T[1]*1024}', f'v_max3_u32 v{tq}, v{tq}, v{MA[1]}, v{MA[1]+2}')
    add(p2, f'v_max3_u32 v{tq}, v{tq}, v{MA[2]}, v{MA[2]+2}'); add(p2 + 1, f'v_cmp_eq_u32 vcc, -1, v{tq}')
    if not cfg.get('nocomm'): add(p2 + 2, f's_cbranch_vccnz {P}_h2r')
    add(35, lambda: tr(k, cfg, 'bar1'))
    wreads('Q8', [1, 1, 2, 2])
    assert pb >= p2 + 2
    def barA():
        n = [i for i, d in enumerate(k.lg) if d is not k.FAKE and not d]
        if n: k.wait(lg=len(k.lg) - 1 - n[-1], explicit=False)
        k.I('s_barrier')
    add(pb, barA, mread(3, R[3]))
    add(pb + 1, mread(4, R[4]))
    wreads(f'Q{T[4]}', [8, 8, 11, 11]); add(12, mread(5, R[5]))
    wreads(f'Q{T[6]}', [16, 17, 18, 19]); add(15, mread(6, R[6])); add(20, mread(7, R[7])); add(23, mread(8, R[8]))
    wreads(f'Q{T[8]}', [24, 24, 25, 25])
    def zread(reg): return f'ds_read_b128 {vr(reg,4)}, v{vL16} offset:{L_Z}'
    add(31, zread(64)); add(32, zread(68))
    add(32, 'v_add_f32 v16, v16, v18'); add(33, 'v_add_f32 v17, v17, v19'); add(34, f'v_cvt_pk_bf16_f32 v57, v16, v17')
    for i in range(4):
        add(pb + 1 + 4*i + w, f'buffer_load_dwordx4 {vr((KX, KX+4, VX, VX+4)[i],4)}, v{vL16}, {ws}, s{sKVX} offen offset:{1024*i} sc1 {cfg.get("kvnt", "")}')
    s0 = cfg.get('slow0', pb + 18)
    ex = srd(S_C)
    land = RD + 3 if EXW else vLAND
    if w == 3:
        add(5, f's_cmp_eq_u32 s{sFLG}, 0', f's_cbranch_scc1 {P}_kvwait', P + '_kvok:')
        add(s0 + 1, lambda: k.I(f'buffer_load_dword v{vLAND}, off, {ws}, s{sFKVX} offset:4 sc1', nocheck=True))
    add(s0 - 1, f's_add_u32 s{sKVX}, s{sKVX}, s{sKVXN}')
    if EXW and not cfg.get('noexp'): add(s0, f'buffer_store_dwordx2 {vr(RD+2,2)}, v{vRST}, {ex}, s{sMHX} offen sc1')
    if not cfg.get('nowarm'):
        pw = s0 + 2*((w + 1) & 3)
        add(pw - 1, f'v_lshlrev_b32 v{land}, 3, v{vL16}')
        add(pw, 's_mov_b32 exec_hi, 0', f'buffer_load_dword v{land}, v{land}, {ws}, s{sKVX} offen sc1 {cfg.get("wnt", "")}', 's_mov_b32 exec_hi, -1')
    late = ['s_nop 0' if cfg.get('nopois') else f'buffer_store_dword v{vNEG1}, v{vRST}, {ws}, s{sMRU} offen {st}',
            's_nop 0' if cfg.get('noexp') else f'buffer_store_dwordx2 {vr(RD,2)}, v{vRST}, {ws}, s{sMHU} offen sc1']
    if EXW: late.append('s_nop 0' if cfg.get('nopois') else f'buffer_store_dword v{vNEG1}, v{vRSX}, {ex}, s{sMRX} offen {st}')
    add(29, f's_mov_b64 vcc, s[{sVAL}:{sVAL+1}]')
    salE = [f's_add_u32 s{sMRU}, s{sUM}, s{sMC}', f's_add_u32 s{sMHU}, s{sMHU}, {M_SLOT}']
    if EXW: salE += [f's_add_u32 s{sMRX}, s{sXM}, s{sMC}', f's_add_u32 s{sMHX}, s{sMHX}, {M_SLOT}']
    salE += [f's_add_u32 s{sMC}, s{sMC}, {0 if cfg.get("nopois") == 2 else MR_SLOT}', f's_cmp_eq_u32 s{sMC}, {WS_M + 3*MR_SLOT}', f's_cselect_b32 s{sMC}, {WS_M}, s{sMC}',
             f's_add_u32 s{sMU}, s{sUM}, s{sMC}', f's_add_u32 s{sMCW}, s{sMC}, {3072*w}',
             ]
    if EXW: salE += [f's_add_u32 s{sMX}, s{sXM}, s{sMC}']
    sal2 = []
    if w == 3: sal2 += [f's_add_u32 s{sFKVX}, s{sFKVX}, 4', f'v_readfirstlane_b32 s{sFLG}, v{vLAND}']
    for p, nm in ((5, 'A1'), (11, 'A2'), (17, 'A3'), (23, 'A4'), (29, 'A5')):
        add(p, lambda nm=nm: stamp(k, cfg, nm))
    interleave(k, mf, fill, cfg.get('dropA', ()))
    stamp(k, cfg, 'B')
    vs = []
    for i, a in ((2, MA[2]), (6, MA[3]), (7, MA[0]), (8, MA[1]), (0, MA[2]), (1, MA[3]), (3, MA[0]), (4, MA[1]), (5, MA[2])):
        for u in range(2): vs.append(SM(ACC[f'v{u}'], a, W(f'V{T[i]}', u)))
    lpos = {11: 0, 17: 1, 9: 2} if EXW else {11 - w: 0, 17 - w: 1}
    def V(n=1):
        for _ in range(n):
            k.I(vs.pop(0))
            if len(vs) in lpos: k.I(late[lpos[len(vs)]])
    PK, QK, ONE = 56, 60, 28
    Sw = L_S + 1024*w
    k.I(f'''
    v_add_f32 v24, v24, v26
    v_add_f32 v25, v25, v27
    v_cvt_pk_bf16_f32 v{PK}, v24, v25
    ds_write_b64 v{vX1W}, {vr(PK,2)} offset:{Sw}
    v_pk_add_f32 v[20:21], v[20:21], v[22:23]
    v_pk_add_f32 v[28:29], v[28:29], v[30:31]
    v_cvt_pk_bf16_f32 v{PK+3}, v20, v21
    v_cvt_pk_bf16_f32 v{PK+2}, v28, v29
    ds_write_b64 v{vX1W}, {vr(PK+2,2)} offset:{Sw+512}
    ds_read_b64_tr_b16 {vr(QK,2)}, v{vX1R} offset:{Sw}
    ds_read_b64_tr_b16 {vr(QK+2,2)}, v{vX1R} offset:{Sw+512}
    ''')
    stamp(k, cfg, 'B1')
    V()
    V(); k.I(mread(0, MA[2])); k.I(f'v_mov_b32 v{ONE}, 0x3f803f80')
    V(); k.I(f'v_mov_b32 v{ONE+1}, 0x3f803f80')
    V(); k.I(mread(1, MA[3]))
    V()
    stamp(k, cfg, 'B2')
    k.I(f'v_mfma_f32_16x16x32_bf16 v[16:19], {vr(KX,4)}, {vr(QK,4)}, 0')
    k.I(f'v_mov_b32 v{ONE+2}, 0x3f803f80')
    k.I(f'v_mfma_f32_16x16x32_bf16 v[20:23], {vr(KX+4,4)}, {vr(QK,4)}, 0')
    k.I(f'v_mov_b32 v{ONE+3}, 0x3f803f80')
    k.I(f'v_mfma_f32_16x16x32_bf16 v[24:27], {vr(QK,4)}, {vr(QK,4)}, 0')
    k.I(f'v_lshrrev_b32 v59, 2, v{vL16}')
    V(); k.I(mread(3, MA[0]))
    stamp(k, cfg, 'B3')
    qp = 'quad_perm:[2,3,0,1] row_mask:0xf bank_mask:0xf'
    for r in range(4):
        k.I(f'v_cndmask_b32_dpp v{16+r}, v{20+r}, v{16+r}, vcc {qp}')
    k.I(f'ds_write_b128 v{vL16}, v[16:19] offset:{Sw}')
    k.I(f'v_cndmask_b32_dpp v24, v25, v24, vcc {qp}')
    k.I(f'ds_write_b32 v59, v24 offset:{L_R5 + 256*w}')
    stamp(k, cfg, 'B4')
    V()
    V(); k.I(mread(4, MA[1]))
    V()
    V(); k.I(mread(5, MA[2]))
    V()
    stamp(k, cfg, 'B5')
    k.wait(lg=2)
    k.I('s_barrier')
    stamp(k, cfg, 'B6')
    k.I(f'ds_read_b128 v[20:23], v{vL16} offset:{L_S + 1024*(w^1)}')
    k.I(f'ds_read_b128 v[72:75], v{vL16} offset:{L_S + 1024*(w^2)}')
    V()
    k.I(f'ds_read_b128 v[76:79], v{vL16} offset:{L_S + 1024*(w^3)}')
    V()
    k.I(f'ds_read2st64_b32 v[26:27], v59 offset0:{L_R5//256 + (w^1)} offset1:{L_R5//256 + (w^2)}')
    V()
    k.I(f'ds_read_b32 v25, v59 offset:{L_R5 + 256*(w^3)}')
    V(); k.I(lds_frag_reads('Oo', 1, 48, w)[1])
    V(); k.I(lds_frag_reads('O00', 0, 56, w)[1])
    V(); k.I(lds_frag_reads('O00', 0, 56, w)[0])
    V()
    assert not vs
    stamp(k, cfg, 'B7')
    for r in range(4): k.I(f'v_add_f32 v{16+r}, v{16+r}, v{20+r}')
    for r in range(2): k.I(f'v_pk_add_f32 {vr(72+2*r,2)}, {vr(72+2*r,2)}, {vr(76+2*r,2)}')
    k.I('v_pk_add_f32 v[24:25], v[24:25], v[26:27]')
    for r in range(2): k.I(f'v_pk_add_f32 {vr(16+2*r,2)}, {vr(16+2*r,2)}, {vr(72+2*r,2)}')
    k.I('v_add_f32 v24, v24, v25')
    stamp(k, cfg, 'C')
    m, t = 72, 73
    WB = [40, 48]
    oo = lds_frag_reads('Oo', 0, WB[0], w) + lds_frag_reads('Oo', 1, WB[1], w)
    o0 = lds_frag_reads('O00', 0, 56, w) + lds_frag_reads('O00', 1, 64, w)
    k.I(f'''
    v_max3_f32 v{m}, v16, v17, v18
    v_max3_f32 v{m}, v{m}, v19, v24
    v_pk_add_f32 v[64:65], v[64:65], v[66:67]
    v_pk_add_f32 v[68:69], v[68:69], v[70:71]
    v_max_f32_dpp v{m}, v{m}, v{m} {qp}
    v_mov_b32 v{t}, v{m}
    v_cvt_pk_bf16_f32 v70, v64, v65
    v_cvt_pk_bf16_f32 v71, v68, v69
    v_permlane16_swap_b32 v{t}, v{m}
    v_max_f32 v{m}, v{m}, v{t}
    v_mov_b32 v{t}, v{m}
    v_mov_b32 v27, 0
    v_mov_b32 v68, 0
    v_permlane32_swap_b32 v{t}, v{m}
    v_max_f32 v{m}, v{m}, v{t}
    v_mul_f32 v{m}, s{sC}, v{m}
    v_fma_f32 v16, v16, s{sC}, -v{m}
    v_fma_f32 v17, v17, s{sC}, -v{m}
    v_fma_f32 v18, v18, s{sC}, -v{m}
    v_fma_f32 v19, v19, s{sC}, -v{m}
    v_fma_f32 v24, v24, s{sC}, -v{m}
    v_exp_f32 v16, v16
    v_exp_f32 v17, v17
    v_exp_f32 v18, v18
    v_exp_f32 v19, v19
    v_cvt_pk_bf16_f32 v20, v16, v17
    v_cvt_pk_bf16_f32 v21, v18, v19
    v_exp_f32 v24, v24
    v_mov_b32_dpp v22, v20 {qp}
    v_mov_b32_dpp v23, v21 {qp}
    v_mov_b32_dpp v25, v24 {qp}
    v_cvt_pk_bf16_f32 v26, v24, v25
    ''')
    stamp(k, cfg, 'D')
    k.I(f'''
    v_mfma_f32_16x16x32_bf16 v[16:19], {vr(ONE,4)}, v[20:23], 0
    {oo[2]}
    v_mov_b32 v69, v26
    v_mfma_f32_16x16x32_bf16 v[72:75], {vr(VX,4)}, v[20:23], 0
    {oo[0]}
    v_mfma_f32_16x16x16_bf16 v[16:19], {vr(ONE,2)}, v[26:27], v[16:19]
    {oo[1]}
    v_mfma_f32_16x16x32_bf16 v[76:79], {vr(VX+4,4)}, v[20:23], 0
    {o0[2]}
    v_mfma_f32_16x16x16_bf16 v[72:75], v[70:71], v[26:27], v[72:75]
    v_rcp_f32 v24, v16
    v_mfma_f32_16x16x16_bf16 v[76:79], v[70:71], v[68:69], v[76:79]
    {o0[3]}
    {f's_mov_b64 exec, s[{sVAL}:{sVAL+1}]' if cfg.get('x2exec', 1) else 's_nop 0'}
    v_pk_mul_f32 v[72:73], v[72:73], v[24:25] op_sel_hi:[1,0]
    v_pk_mul_f32 v[74:75], v[74:75], v[24:25] op_sel_hi:[1,0]
    v_cvt_pk_bf16_f32 v36, v72, v73
    v_cvt_pk_bf16_f32 v37, v74, v75
    v_pk_mul_f32 v[76:77], v[76:77], v[24:25] op_sel_hi:[1,0]
    v_pk_mul_f32 v[78:79], v[78:79], v[24:25] op_sel_hi:[1,0]
    v_cvt_pk_bf16_f32 v38, v76, v77
    v_cvt_pk_bf16_f32 v39, v78, v79
    ds_write_b128 v{vX2W}, v[36:39] offset:{L_X2 + 512*w}
    {'s_mov_b64 exec, -1' if cfg.get('x2exec', 1) else ''}
    ''')
    OACC = [16, 20, 24, 28, 32, 56, 60, 64, 68]
    stamp(k, cfg, 'E')
    for a in range(16, 36, 2): k.I(f'v_mov_b64 {vr(a,2)}, 0')
    for s in salE[:5]: k.I(s)
    k.wait(lg=0)
    k.I('s_barrier')
    OA = [72, 76]
    for kp in range(2): k.I(f'ds_read_b128 {vr(OA[kp],4)}, v{vL16} offset:{L_X2 + 1024*kp}')
    for s in salE[5:]: k.I(s)
    stamp(k, cfg, 'F')
    mf = [SM(OACC[0], OA[0], vr(WB[0], 8)), SM(OACC[0], OA[1], vr(WB[1], 8))]
    for i in range(4):
        for kp in range(2):
            nm = f'O{i}{kp}'
            for u in range(2):
                mf.append(SM(OACC[1 + 2*i + u], OA[kp], vr(56 + 8*u, 8) if nm == 'O00' else vr(WB[u], 8) if nm in LDS_CH else W(nm, u)))
    fill = {}
    wreads('O11', [0, 1, 2, 3], WB); wreads('O31', [8, 9, 10, 11], WB)
    add(4, zread(56)); add(5, zread(60)); add(6, zread(64)); add(8, zread(68))
    def fin(a): return [f'v_add_f32 v{a}, v{a}, v{a+2}', f'v_add_f32 v{a+1}, v{a+1}, v{a+3}']
    def cv(d, a): return f'v_cvt_pk_bf16_f32 v{d}, v{a}, v{a+1}'
    def pk(a): return f'v_pk_add_f32 {vr(a,2)}, {vr(a,2)}, {vr(a+2,2)}'
    def pst(i, d): return f'buffer_store_dwordx2 {vr(d,2)}, v{vPST}, {ws}, s{sP0+i} offen {st}'
    O = OACC
    def tag(d): return f'v_bfi_b32 v{d}, v{vTM}, s{sSTEP}, v{d}'
    ready = [3, 6, 7, 10, 11, 14, 15, 18, 19]
    vps = cfg.get('vps', [1]*18)
    jobs = [(ready[0], x) for x in fin(O[0]) + [cv(36, O[0]), tag(36), f'buffer_store_dword v36, v{vPSO}, {ws}, s{sP0} offen {st}']]
    for i in range(4):
        d = 38 if i % 2 == 0 else 36
        a, b = O[1 + 2*i], O[2 + 2*i]
        jobs += [(ready[1+2*i], x) for x in fin(a) + [cv(d, a), tag(d)]] + [(ready[2+2*i], x) for x in fin(b) + [cv(d+1, b), pst(i, d)]]
    for p in range(18):
        n = vps[p]
        while jobs and jobs[0][0] <= p:
            x = jobs[0][1]
            if x.startswith('v_'):
                if n == 0: break
                n -= 1; add(p, x)
            else:
                if n < vps[p]:
                    if p == 17: break
                    add(p + 1, x)
                else: add(p, x)
            jobs.pop(0)
    post = []
    rest = [x for _, x in jobs]
    while rest:
        if len(rest) > 1 and rest[0].startswith('v_add_f32') and rest[1].startswith('v_add_f32') and int(rest[0].split()[1][1:-1]) % 4 == 0:
            post.append(pk(int(rest[0].split()[1][1:-1]))); rest = rest[2:]
        else: post.append(rest.pop(0))
    exl = [f'buffer_load_dwordx4 v[16:19], v{vL16}, {srd(S_C)}, s{sPX} offen sc1', f'buffer_load_dwordx4 v[20:23], v{vL16}, {srd(S_C)}, s{sPX} offen offset:1024 sc1']
    exearly = cfg.get('exearly', 0)
    if EXW and exearly: add(15, exl[0]); add(16, exl[1])
    for p, nm in ((0, 'F1'), (5, 'F2'), (9, 'F3'), (13, 'F4'), (17, 'F5')):
        fill.setdefault(p, []).insert(0, lambda nm=nm: stamp(k, cfg, nm))
    interleave(k, mf, fill, cfg.get('dropF', ()))
    for s in post:
        if not any(d in s for d in cfg.get('dropF', ())): k.I(s)
    stamp(k, cfg, 'hop1')
    tr(k, cfg, 'std')
    AS, D = 44, 40
    def red(rd, so, retry, rs, r):
        k.I(f'v_bitop3_b32 v{rd}, v{r}, v{r+4}, s{sSTEP} bitop3:0x7e', nocheck=True)
        k.I(f'v_and_b32 v{rd}, v{vTM}, v{rd}')
        k.I(f'v_cmp_ne_u32 vcc, 0, v{rd}')
        k.I(f'v_mfma_f32_16x16x32_bf16 {vr(D,4)}, {vr(AS,4)}, {vr(r,4)}, 0', nocheck=True)
        k.I(f'v_mfma_f32_16x16x32_bf16 {vr(D,4)}, {vr(AS,4)}, {vr(r+4,4)}, {vr(D,4)}', nocheck=True)
        if not cfg.get('nocomm'):
            if rd == RD: k.I('s_cbranch_vccnz ' + retry)
            else: k.I(f's_and_b64 s[78:79], vcc, s[{sEXM}:{sEXM+1}]'); k.I('s_cbranch_scc1 ' + retry)
        k.I(f'buffer_store_dword v{PV_}, v{PF_ if rd == RD else PX_}, {ws}, s{sEX} offen offset:{256*w if rd == RD else 128} {st}')
        if opt and rd == RD: poll(npre)
        for ro in (8, 4):
            for j in range(4):
                k.I(f'v_add_f32_dpp v{D+j}, v{D+j}, v{D+j} row_ror:{ro} row_mask:0xf bank_mask:0xf')
        k.I(f'''
        v_cvt_pk_bf16_f32 v{rd}, v{D}, v{D+1}
        v_cvt_pk_bf16_f32 v{rd+1}, v{D+2}, v{D+3}
        buffer_store_dwordx2 {vr(rd,2)}, v{vRST if rd == RD else vRSX}, {rs}, s{so} offen {st}
        ''', nocheck=True)
    def red_loads(r, so, ws):
        k.I(f'buffer_load_dwordx4 {vr(r,4)}, v{vL16}, {ws}, s{so} offen sc1', nocheck=True)
        k.I(f'buffer_load_dwordx4 {vr(r+4,4)}, v{vL16}, {ws}, s{so} offen offset:1024 sc1', nocheck=True)
    def poll(j): k.I(f'buffer_load_dword v{PR[j]}, v{PA_}, {ws}, s{sSY} offen offset:{256*w} sc1', nocheck=True)
    pre = [f'v_lshrrev_b32 v{PA_}, 2, v{vL16}', f'v_lshl_or_b32 v{PV_}, s{sSTEP}, 1, 1', f'v_add_u32 v{PW_}, -1, v{PV_}', f's_mov_b32 s{sRT}, 0',
            f'v_lshlrev_b32 v{PF_}, 6, v{vL16}', f'v_cmp_gt_u32 vcc, {16*SYR}, v{vL16}', 's_nop 1', f'v_cndmask_b32 v{PF_}, {OOB:#x}, v{PF_}, vcc']
    pre += [f'v_mov_b32 v{D}, 0x3f80', f'v_cndmask_b32 v{D}, v{D}, 1.0, s[{sMSK}:{sMSK+1}]']
    pre += [f'v_cndmask_b32 v{AS+n}, 0, v{D}, s[{sMSK+2+2*n}:{sMSK+3+2*n}]' for n in range(4)]
    if EXW: pre += [f'v_lshlrev_b32 v{PX_}, 4, v{vL16}', f'v_cmp_gt_u32 vcc, {64*SYR}, v{vL16}', 's_nop 1', f'v_cndmask_b32 v{PX_}, {OOB:#x}, v{PX_}, vcc']
    pre += lds_frag_reads(f'Q{2*w}', 0, WR[0], w) + lds_frag_reads(f'Q{2*w}', 1, WR[1], w)
    if not EXW: pre += [f'v_mov_b64 {vr(a,2)}, 0' for a in range(16, 24, 2)]
    if EXW and not exearly: k.I(exl[0]); k.I(exl[1])
    nb = max(min(len(pre), d1 // 5), 8)
    for s in pre[:nb]: k.I(s)
    k.nop(max(d1 - 5*nb, 0) // 4)
    red_loads(24, sPU, ws)
    tr(k, cfg, 'h1i')
    stamp(k, cfg, 'h1i')
    if opt: k.I(f'buffer_store_dword v{PW_}, v{PF_}, {ws}, s{sEX} offen offset:{256*w}')
    t0 = k.time
    for s in pre[nb:]: k.I(s)
    npre = 0
    def prepolls():
        nonlocal npre
        for at in opt['at']:
            k.nop(max(t0 + at - k.time, 0) // 4); poll(npre); npre += 1
    if EXW:
        k.raw(f'  s_waitcnt vmcnt({(5 if exearly else 2) + (1 if opt else 0)})')
        k.label(P + '_h1x')
        red(RD + 2, sMX, P + '_rx', ex, 16)
        for a in range(16, 24, 2): k.I(f'v_mov_b64 {vr(a,2)}, 0', nocheck=True)
        if opt: prepolls()
        k.raw(f'  s_waitcnt vmcnt({3 + npre if opt else 2})')
    else:
        if opt: prepolls()
        k.raw(f'  s_waitcnt vmcnt({1 + npre if opt else 0})')
    k.label(P + '_h1m')
    k.vm = []
    tr(k, cfg, 'h1d')
    stamp(k, cfg, 'h1d')
    red(RD, sMU, P + '_ru', ws, 24)
    tr(k, cfg, 'red')
    stamp(k, cfg, 'hop2')
    k.nop(d2 // 4)
    work = [f's_add_u32 s{sSTEP}, s{sSTEP}, 1', f's_cmp_eq_u32 s{sSTEP}, {NSTEP}', f's_cbranch_scc1 {P}_done']
    work += [f'v_mov_b64 {vr(a,2)}, 0' for a in range(24, 32, 2)] + sal2
    pi = cfg.get('pi', 44)
    if opt:
        t1 = k.time
        poll(npre + 1)
        k.raw(f'  s_waitcnt vmcnt({npre + 3})')
        k.I(f'v_cmp_gt_i32 vcc, v{PW_}, v{PR[0]}', nocheck=True)
        for s in work: k.I(s)
        k.nop(max(t1 + opt['d'][w] - 50 - k.time, 0) // 4)
    else:
        for j in range(NP):
            poll(j); t0 = k.time
            if j < NP - 1:
                while work and k.time < t0 + pi - 8: k.I(work.pop(0))
                k.nop(max(t0 + pi - 4 - k.time, 0) // 4)
        for s in work: k.I(s)
    k.I(f's_branch {P}_top')
    if k.prof is not None: cfg.setdefault('prof_text', {})[P] = k.prof_text
    k.prof = None
    k.reset()
    k.label(P + '_h2r')
    if cfg.get('stamps') == 2: k.raw(f'  s_add_u32 s12, s12, 1')
    k.I(f's_sub_u32 s{sBUD}, s{sBUD}, 1')
    k.I('s_cbranch_scc1 L_exit')
    k.nop(8)
    for a in range(16, 32, 2): k.I(f'v_mov_b64 {vr(a,2)}, 0')
    qre = lds_frag_reads(f'Q{2*w}', 0, WR[0], w) + lds_frag_reads(f'Q{2*w}', 1, WR[1], w)
    for s in qre: k.I(s)
    k.I(f's_branch {P}_fl0' if opt else f's_branch {P}_h2')
    k.label(P + '_entry')
    for s in qre: k.I(s)
    k.I(f'v_mov_b32 v{PV_}, -1\nv_lshrrev_b32 v{PA_}, 2, v{vL16}')
    k.I(f's_branch {P}_h2')
    if opt:
        k.reset()
        k.label(P + '_sy')
        k.I(f's_cmp_lg_u32 s{sRT}, 0'); k.I(f's_cbranch_scc1 {P}_fl0')
        at = list(opt['at']) + list(opt['post'])
        for j in range(1, npre + 2):
            if cfg.get('stamps') == 2: k.raw('  s_add_u32 s15, s15, 1')
            k.raw(f'  s_waitcnt vmcnt({npre + 3 - j if j < npre else 2 if j == npre else 0})')
            k.I(f'v_cmp_gt_i32 vcc, v{PW_}, v{PR[j]}', nocheck=True)
            k.nop(max(at[j] - at[j-1] - (80 if j == 1 else 24), 8) // 4)
            k.I(f's_cmp_lg_u32 vcc_lo, 0'); k.I(f's_cbranch_scc0 {P}_h2')
        k.label(P + '_fl0')
        for j in range(1, NP):
            poll(j); k.nop(pi // 4 - 1)
    k.reset()
    k.label(P + '_fl')
    for j in range(NP):
        if cfg.get('stamps') == 2: k.raw('  s_add_u32 s16, s16, 1')
        poll(j)
        k.raw(f'  s_waitcnt vmcnt({NP-1})')
        k.I(f'v_cmp_gt_i32 vcc, v{PV_}, v{PR[(j+1) % NP]}', nocheck=True)
        k.I(f's_cbranch_vccz {P}_h2')
    k.I(f's_sub_u32 s{sBUD}, s{sBUD}, 1')
    k.I('s_cbranch_scc1 L_exit')
    k.I(f's_branch {P}_fl')
    rets = [('_ru', 24, sPU, sMU, '_h1m', '_h1d', RD)]
    if EXW: rets.append(('_rx', 16, sPX, sMX, '_h1x', '_h1xd', RD + 2))
    for nm, r, so, sm, back, done, rd in rets:
        k.reset()
        k.label(P + nm)
        if cfg.get('stamps') == 2: k.raw(f'  s_add_u32 s{13 if nm == "_ru" else 14}, s{13 if nm == "_ru" else 14}, 1')
        red_loads(r, so, ws)
        k.I(f's_mov_b32 s{sRT}, 1')
        k.I(f's_sub_u32 s{sBUD}, s{sBUD}, 1')
        k.I('s_cbranch_scc1 L_exit')
        k.wait(vm=0)
        k.I(f's_branch {P}{back}')
    if w == 3:
        k.reset()
        k.label(P + '_kvwait')
        k.I(f'''
        buffer_load_dword v{vLAND}, off, {ws}, s{sFKVX} sc1
        s_sub_u32 s{sBUD}, s{sBUD}, 1
        s_cbranch_scc1 L_exit
        s_waitcnt vmcnt(0)
        v_cmp_eq_u32 vcc, 0, v{vLAND}
        s_cbranch_vccnz {P}_kvwait
        s_branch {P}_kvok
        ''')
    k.reset()
    k.label(P + '_done')
    k.I(f'buffer_store_dwordx2 {vr(RD,2)}, v{vRST}, {ws}, s{sMHU} offen sc1')
    if EXW:
        k.I(f'buffer_store_dwordx2 {vr(RD+2,2)}, v{vRST}, {srd(S_C)}, s{sMHX} offen sc1')
    if cfg.get('trace'): PROFREGS = list(range(80, 98, 2))
    if cfg.get('prof') is not None or cfg.get('trace'):
        k.raw('  s_waitcnt lgkmcnt(0)')
        for i, r in enumerate(PROFREGS): k.I(f'v_mov_b32 v{20+i}, s{r}')
        k.I(f's_add_u32 s{sT}, s{sU64}, {WS_STAMP:#x}')
        for i in range(4): k.I(f'buffer_store_dwordx4 {vr(20+4*i,4)}, off, {ws}, s{sT} offset:{16*i}')
    if cfg.get('stamps'):
        k.raw('  s_memtime s[78:79]\n  s_memrealtime s[74:75]\n  s_waitcnt lgkmcnt(0)')
        for i in range(10): k.I(f'v_mov_b32 v{20+i}, s{12+i if i < 8 else 80+2*i}')
        k.I(f'v_mov_b32 v30, s78\nv_mov_b32 v31, s{sBUD}\nv_mov_b32 v32, s100\nv_mov_b32 v33, s74\nv_mov_b32 v34, s26\nv_mov_b32 v35, 0')
        k.I(f's_add_u32 s{sT}, s{sU64}, {WS_STAMP:#x}')
        for i in range(4): k.I(f'buffer_store_dwordx4 {vr(20+4*i,4)}, off, {ws}, s{sT} offset:{16*i}')
    k.I('s_branch L_exit')
```

```python
from asmlib import *
from layout import *

S_WS, S_DBG, S_A, S_B, S_C, S_D = 4, 8, 12, 16, 20, 24
sPOOL, sSLOT, sW, sBUD, sFOREIGN = 28, 29, 30, 31, 32
BUDGET = 1 << 21

def srd(n): return f's[{n}:{n+3}]'

def load_srds(k, pairs):
    for s, name in pairs:
        k.I(f's_load_dwordx2 s[{s}:{s+1}], s[0:1], {KA[name]}')
    k.wait(lg=0)
    for s, name in pairs:
        k.I(f's_mov_b32 s{s+2}, {SZ[name]:#x}')
        k.I(f's_mov_b32 s{s+3}, 0x20000')

def frag_reg(dest, off, n):
    kind, base = dest
    return vr(base + off, n, kind)

def load_chunks(k, chunks, sLW, sT, vLin, vtmp, nslot=9, after_first=None, marks=None, after_issue=None):
    n = len(chunks)
    def dma(c):
        ch = chunks[c]; slot = c % nslot
        for i in range(4):
            k.I(f's_add_u32 m0, s{sLW}, {slot*4096 + i*1024}')
            k.I(ch['soff'](i))
            k.I(f"buffer_load_dwordx4 {ch['vdma']}, {srd(ch['srd'])}, s{sT} offen lds")
    issued = min(nslot, n)
    if marks: marks(-2)
    for c in range(issued): dma(c)
    if marks: marks(-1)
    if after_issue: after_issue()
    for c in range(n):
        ch = chunks[c]; slot = c % nslot
        k.wait(vm=4 * (issued - 1 - c))
        if marks: marks(c)
        if c == 0 and after_first: after_first()
        dest = ch['dest'] or [('v', vtmp), ('v', vtmp + 8)]
        for u in range(2):
            for hf in range(2):
                for sub in range(2):
                    k.I(f"ds_read_b64_tr_b16 {frag_reg(dest[u], 4*hf + 2*sub, 2)}, {ch['vtr']} offset:{slot*4096 + ch['imm'](u, hf, sub)}")
        k.wait(lg=0)
        if ch['dest'] is None:
            for q in range(4):
                k.I(f'ds_write_b128 v{vLin}, {vr(vtmp + 4*q, 4)} offset:{slot*4096 + q*1024}')
        if issued < n:
            assert ch['dest'] is not None
            dma(issued); issued += 1
    k.wait(vm=0, lg=0)

def spin_dbg(k, name, off, cond_lines, vt=(16, 17)):
    a, d = vt
    k.I(f'v_mov_b32 v{a}, {off}')
    k.label(name)
    k.I(f'buffer_load_dword v{d}, v{a}, {srd(S_DBG)}, 0 offen sc1')
    k.I(f's_sub_u32 s{sBUD}, s{sBUD}, 1')
    k.I('s_cbranch_scc1 L_exit')
    k.wait(vm=0)
    k.I(f'v_readfirstlane_b32 s33, v{d}')
    k.I(cond_lines)
    k.I(f's_cbranch_scc1 {name}_ok')
    k.I('s_sleep 2')
    k.I(f's_branch {name}')
    k.label(name + '_ok')
    k.reset()

def mask64(f):
    m = 0
    for l in range(64):
        if f(l): m |= 1 << l
    return m
def set_mask(k, s, f):
    m = mask64(f)
    k.I(f's_mov_b32 s{s}, {m & 0xffffffff:#x}'); k.I(f's_mov_b32 s{s+1}, {m >> 32:#x}')

def interleave(k, mf, fill, drop=()):
    for i, m in enumerate(mf):
        k.I(m)
        fl = [f for f in fill.get(i, []) if not (isinstance(f, str) and any(d in f for d in drop))]
        isv = lambda f: isinstance(f, str) and f.startswith('v_')
        for f in [f for f in fl if not isv(f)] + [f for f in fl if isv(f)]: k.I(f) if isinstance(f, str) else f()

S_KA = 64
def make_srds(k, pairs):
    for s, name in pairs:
        p = S_KA + KA[name] // 4
        k.I(f's_mov_b32 s{s}, s{p}\ns_mov_b32 s{s+1}, s{p+1}\ns_mov_b32 s{s+2}, {SZ[name]:#x}\ns_mov_b32 s{s+3}, 0x20000')
```

```python
WS_SIZE = 0x10000000
WS_P    = 0x0
P_SLOT  = 0x80000
WS_M    = 0x300000
M_SLOT  = 9216
WS_SY   = 0x58000
WS_F    = 0x60000
F_KVX   = WS_F
F_OCNT  = WS_F+0x2000
F_SIZE  = 0x4000
WS_G    = 0x70000
WS_R    = 0x72000
WS_SEL  = 0x74000
WS_UPD  = 0x75000
WS_MH   = 0x200000
WS_MP   = 0x100000
WS_KVX  = 0x1000000
WS_O    = 0x3000000
OOB     = 0x40000000
LDS_OOB = 0x38000
SENT_P  = 0x7FA57FA5
D_POOL=0
D_CHAIN=32
D_INIT=64
D_RS=96
D_MOD1=128
D_MOD2=160
D_LOADED=192
KA = dict(x=0, mem0=8, Wq=16, Wk=24, Wv=32, Wo=40, wr=64, wg=72, wu=80, wd=88, gw=96, out=104, dbg=112, ws=120)
SZ = dict(x=2048*1152, mem0=9216, Wq=576*8192, Wk=576*8192, Wv=576*8192, Wo=4096*1152, wr=1152, wg=576*9216, wu=576*9216,
          wd=4608*1152, gw=1152, out=2048*1152, dbg=256, ws=WS_SIZE)
WS_STAMP = 0xF00000
N_INIT = 6
```

```python
from common import *
import numpy as np
def f32b(x): return int(np.float32(x).view(np.uint32))
LOG2E = 1.4426950408889634
ws = srd(S_WS)

def wdest27(i):
    if i < 16: return [('a', 16*i), ('a', 16*i + 8)]
    return [('v', 80 + 16*(i-16)), ('v', 88 + 16*(i-16))]
def fr(d, off=0, n=8): return vr(d[1] + off, n, d[0])

def lane_consts(k, lane, c, g):
    k.I(f'v_mov_b32 v{lane}, v0\nv_and_b32 v{c}, 15, v{lane}\nv_lshrrev_b32 v{g}, 4, v{lane}')
def sparse_idx(k, vI, lane, t0, t1):
    k.I(f'''
    v_mov_b32 v{vI}, 0x4444
    v_mov_b32 v{t0}, 0xeeee
    v_and_b32 v{t1}, 2, v{lane}
    v_cmp_ne_u32 vcc, 0, v{t1}
    v_cndmask_b32 v{vI}, v{vI}, v{t0}, vcc
    ''')
def signal(k, rs, so, off, vone, vl0):
    k.wait(vm=0)
    k.I('s_barrier')
    k.I(f'v_mov_b32 v{vone}, 1')
    k.I(f'buffer_atomic_add v{vone}, v{vl0}, {rs}, {so} offen offset:{off}')
def lane0_off(k, v, lane):
    k.I(f's_lshl_b32 s33, s{sW}, 6\nv_or_b32 v{v}, s33, v{lane}\nv_min_u32 v{v}, 1, v{v}\nv_lshlrev_b32 v{v}, 30, v{v}')
def xlane_g(k, op, v, t, fill=()):
    for sw in ('v_permlane16_swap_b32', 'v_permlane32_swap_b32'):
        k.I(f'v_mov_b32 v{t}, v{v}'); k.I(f'{sw} v{t}, v{v}'); k.I(f'{op} v{v}, v{v}, v{t}')
def rnd_bf16(k, pairs, t):
    for a, b in pairs:
        k.I(f'v_cvt_pk_bf16_f32 v{t}, v{a}, v{b}\nv_lshlrev_b32 v{a}, 16, v{t}\nv_and_b32 v{b}, 0xffff0000, v{t}')

def role_init(k, cfg):
    k.label('L_init'); k.reset()
    k.I(f'''
    s_sub_u32 s34, s{sPOOL}, 5
    s_lshl_b32 s34, s34, 1
    s_add_u32 s34, s34, s{sSLOT}
    s_sub_u32 s34, s34, 30
    s_lshl_b32 s34, s34, 2
    s_add_u32 s34, s34, s{sW}
    v_lshlrev_b32 v1, 4, v0
    v_mov_b64 v[4:5], -1
    v_mov_b64 v[6:7], -1
    v_mov_b64 v[8:9], 0
    v_mov_b64 v[10:11], 0
    s_lshl_b32 s35, s34, 10
    s_add_u32 s35, s35, {WS_F}
    s_cmp_lt_u32 s34, 16
    s_cbranch_scc0 L_init2
    buffer_store_dwordx4 v[8:11], v1, {ws}, s35 offen sc1
    ''')
    k.label('L_init2')
    k.I(f's_mul_i32 s35, s34, 24576\ns_add_u32 s35, s35, {WS_MH}')
    for i in range(24):
        k.I(f'buffer_store_dwordx4 v[4:7], v1, {ws}, s35 offen offset:{(i%4)*1024} sc1')
        if i % 4 == 3: k.I('s_add_u32 s35, s35, 4096')
    lane0_off(k, 2, 0)
    signal(k, srd(S_DBG), 0, D_INIT, 3, 2)
    k.I('s_branch L_exit')

def role_pa(k, cfg):
    k.label('L_pa'); k.reset()
    sH, sJ, sLW, sT, sSEG, sXS, sXB, sST, sIT, sKV, sFL, sMH, sO, sOC, sC = range(34, 49)
    vL16, vIDX, vXD, vSTW, vQR, vVR, vIMW, vL8, vDLT, vL0, vXR = range(11)
    XB, STB, IMG = 0, 73728, 122880
    lane, c, g, t0, t1, t2 = 79, 78, 77, 76, 75, 74
    make_srds(k, [(S_A, 'Wq'), (S_B, 'Wk'), (S_C, 'Wv'), (S_D, 'x')])
    lane_consts(k, lane, c, g)
    k.I(f'''
    s_sub_u32 s{sT}, s{sPOOL}, 1
    s_lshl_b32 s{sT}, s{sT}, 5
    s_add_u32 s{sT}, s{sT}, s{sSLOT}
    s_lshr_b32 s{sH}, s{sT}, 2
    s_and_b32 s{sJ}, s{sT}, 3
    v_lshlrev_b32 v{vL16}, 4, v{lane}
    v_lshlrev_b32 v{vL8}, 3, v{lane}
    v_add_u32 v{vL8}, {IMG}, v{vL8}
    v_mul_u32_u24 v{vXD}, 1152, v{c}
    v_lshl_add_u32 v{vXD}, v{g}, 4, v{vXD}
    s_lshr_b32 s{sT}, s{sW}, 1
    s_mul_i32 s{sT}, s{sT}, {16*1152}
    s_and_b32 s33, s{sW}, 1
    s_mul_i32 s33, s33, 576
    s_add_u32 s{sT}, s{sT}, s33
    v_add_u32 v{vXD}, s{sT}, v{vXD}
    v_lshlrev_b32 v{t0}, 5, v{c}
    v_lshl_add_u32 v{t0}, v{g}, 3, v{t0}
    s_lshl_b32 s{sT}, s{sW}, 10
    s_add_u32 s{sT}, s{sT}, {IMG}
    v_add_u32 v{vIMW}, s{sT}, v{t0}
    s_and_b32 s{sT}, s{sW}, 1
    s_lshl_b32 s{sT}, s{sT}, 4
    v_lshlrev_b32 v{t0}, 2, v{g}
    v_sub_u32 v{vDLT}, v{c}, v{t0}
    v_add_u32 v{vDLT}, s{sT}, v{vDLT}
    s_mov_b32 s{sC}, {f32b(128**-0.5 * LOG2E):#x}
    s_mov_b32 s{sXS}, s{sJ}
    s_mov_b32 s{sXB}, 0
    ''')
    sparse_idx(k, vIDX, lane, t0, t1)
    lane0_off(k, vL0, lane)
    def xdma():
        k.I(f's_mul_i32 s{sT}, s{sXS}, {32*1152}')
        k.I(f's_mul_i32 s33, s{sW}, 9216\ns_add_u32 s33, s33, s{sXB}')
        for i in range(9):
            k.I(f's_add_u32 m0, s33, {i*1024}')
            k.I(f'buffer_load_dwordx4 v{vXD}, {srd(S_D)}, s{sT} offen lds')
            if i < 8: k.I(f's_add_u32 s{sT}, s{sT}, 64')
        k.I(f's_add_u32 s{sXS}, s{sXS}, 4\ns_min_u32 s{sXS}, s{sXS}, 63\ns_xor_b32 s{sXB}, s{sXB}, 36864')
    xdma()
    vD, vTN = 40, 41
    k.I(f'''
    s_mul_i32 s{sLW}, s{sW}, 28672
    s_add_u32 s{sLW}, s{sLW}, 49152
    v_lshrrev_b32 v{t0}, 2, v{lane}
    v_and_b32 v{t1}, 3, v{lane}
    v_lshlrev_b32 v{t1}, 4, v{t1}
    v_lshl_add_u32 v{vD}, v{t0}, 13, v{t1}
    s_lshl_b32 s{sT}, s{sH}, 8
    s_lshl_b32 s33, s{sW}, 6
    s_add_u32 s{sT}, s{sT}, s33
    v_add_u32 v{vD}, s{sT}, v{vD}
    v_lshrrev_b32 v{t0}, 2, v{c}
    v_and_b32 v{t1}, 3, v{c}
    v_lshl_add_u32 v{t2}, v{g}, 3, v{t0}
    v_lshlrev_b32 v{t2}, 6, v{t2}
    v_lshl_add_u32 v{vTN}, v{t1}, 3, v{t2}
    v_add_u32 v{vTN}, s{sLW}, v{vTN}
    ''')
    WD = {}
    chunks = []
    for n in range(9):
        for m, sr in (('Q', S_A), ('K', S_B), ('V', S_C)):
            d = wdest27(len(chunks)); WD[m, n] = d
            chunks.append(dict(srd=sr, vdma=f'v{vD}', soff=lambda i, n=n: f's_mov_b32 s{sT}, {(n << 19) | (i << 17):#x}', vtr=f'v{vTN}',
                               imm=lambda u, hf, sub: (32*hf + 4*sub)*64 + 32*u, dest=d))
    load_chunks(k, chunks, sLW, sT, vL16, 56, nslot=7)
    spin_dbg(k, 'L_pa_init', D_INIT, f's_cmp_ge_u32 s33, {N_INIT}')
    k.I(f'''
    s_lshl_b32 s{sKV}, s{sH}, 14
    s_lshl_b32 s{sT}, s{sJ}, 19
    s_add_u32 s{sKV}, s{sKV}, s{sT}
    s_lshl_b32 s{sT}, s{sW}, 12
    s_add_u32 s{sKV}, s{sKV}, s{sT}
    s_add_u32 s{sKV}, s{sKV}, {WS_KVX:#x}
    s_lshl_b32 s{sFL}, s{sH}, 8
    s_lshl_b32 s{sT}, s{sJ}, 2
    s_add_u32 s{sFL}, s{sFL}, s{sT}
    s_add_u32 s{sFL}, s{sFL}, {F_KVX:#x}
    s_mul_i32 s{sMH}, s{sJ}, {M_SLOT}
    s_add_u32 s{sMH}, s{sMH}, {WS_MH:#x}
    s_lshl_b32 s{sO}, s{sJ}, 18
    s_and_b32 s{sT}, s{sW}, 1
    s_lshl_b32 s{sT}, s{sT}, 17
    s_add_u32 s{sO}, s{sO}, s{sT}
    s_lshl_b32 s{sT}, s{sH}, 12
    s_add_u32 s{sO}, s{sO}, s{sT}
    s_lshr_b32 s{sT}, s{sW}, 1
    s_lshl_b32 s{sT}, s{sT}, 11
    s_add_u32 s{sO}, s{sO}, s{sT}
    s_add_u32 s{sO}, s{sO}, {WS_O:#x}
    s_lshl_b32 s{sOC}, s{sJ}, 7
    s_add_u32 s{sOC}, s{sOC}, {F_OCNT:#x}
    s_lshl_b32 s{sT}, s{sW}, 10
    s_add_u32 s{sT}, s{sT}, {STB}
    v_add_u32 v{vSTW}, s{sT}, v{vL16}
    s_and_b32 s{sT}, s{sW}, 1
    s_lshl_b32 s{sT}, s{sT}, 12
    s_add_u32 s{sT}, s{sT}, {STB}
    v_add_u32 v{vQR}, s{sT}, v{vL16}
    s_lshr_b32 s{sT}, s{sW}, 1
    s_lshl_b32 s{sT}, s{sT}, 11
    s_add_u32 s{sT}, s{sT}, {STB + 16384}
    v_add_u32 v{vVR}, s{sT}, v{vL16}
    v_mov_b32 v{vXR}, v{vL16}
    s_mov_b32 s{sST}, 0
    s_mov_b32 s{sIT}, 0
    s_barrier
    ''')
    k.label('L_pa_proj'); k.reset()
    xdma()
    A = {}
    i = 0
    for m in 'QKV':
        for u in range(2):
            for tt in range(2): A[m, u, tt] = 16 + 4*i; i += 1
    XF = lambda ks, tt: 64 + 8*(ks & 1) + 4*tt
    def xread(ks):
        for tt in range(2): k.I(f'ds_read_b128 {vr(XF(ks,tt),4)}, v{vXR} offset:{(tt*18 + ks)*1024}')
    xread(0)
    for ks in range(18):
        first = True
        for m in 'QKV':
            for u in range(2):
                wf = fr(WD[m, ks >> 1][u], 4*(ks & 1), 4)
                for tt in range(2):
                    a = vr(A[m, u, tt], 4); x = vr(XF(ks, tt), 4)
                    ops = (wf, x) if m != 'V' else (x, wf)
                    k.I(f'v_mfma_f32_16x16x32_bf16 {a}, {ops[0]}, {ops[1]}, {a if ks else 0}')
                    if first and tt == 1 and ks < 17: xread(ks + 1); first = False
    quads = [('Q', 0), ('Q', 1), ('K', 0), ('K', 1), ('V', 0), ('V', 1)]
    for qi, (m, x) in enumerate(quads):
        d = 64 + 4*(qi % 4)
        src = [A[m, 0, x], A[m, 1, x]] if m != 'V' else [A[m, x, 0], A[m, x, 1]]
        for h in range(2):
            k.I(f'v_cvt_pk_bf16_f32 v{d+2*h}, v{src[h]}, v{src[h]+1}\nv_cvt_pk_bf16_f32 v{d+2*h+1}, v{src[h]+2}, v{src[h]+3}')
        k.I(f'ds_write_b128 v{vSTW}, {vr(d,4)} offset:{qi*4096}')
        if qi >= 2: k.I(f'buffer_store_dwordx4 {vr(d,4)}, v{vL16}, {ws}, s{sKV} offen offset:{(qi-2)*1024} sc1')
    k.wait(vm=0, lg=0)
    k.I(f'''
    s_barrier
    buffer_store_dword v{vIDX}, v{vL0}, {ws}, s{sFL} offen sc1
    s_add_u32 s{sKV}, s{sKV}, {4 << 19}
    s_add_u32 s{sFL}, s{sFL}, 16
    v_xor_b32 v{vXR}, 36864, v{vXR}
    s_bitcmp1_b32 s{sIT}, 0
    s_cselect_b32 s{sT}, -1, 1
    s_mul_i32 s{sT}, s{sT}, 24576
    v_add_u32 v{vSTW}, s{sT}, v{vSTW}
    s_add_u32 s{sIT}, s{sIT}, 1
    s_cmp_eq_u32 s{sIT}, 1
    s_cbranch_scc1 L_pa_proj
    ''')
    k.label('L_pa_att'); k.reset()
    Q, KF, S0, MAf, KA = 16, 32, 64, 16, 52
    vKR = 11
    k.I(f'v_add_u32 v{vKR}, s{sST}, v{vL16}\nv_add_u32 v{vKR}, {STB + 8192}, v{vKR}')
    for ks in range(4): k.I(f'ds_read_b128 {vr(Q+4*ks,4)}, v{vQR} offset:{ks*1024}')
    for t in range(2):
        for ks in range(4): k.I(f'ds_read_b128 {vr(KF+16*t+4*ks,4)}, v{vKR} offset:{t*4096 + ks*1024}')
    for ks in range(4):
        for t in range(2):
            a = vr(S0+4*t, 4)
            k.I(f'v_mfma_f32_16x16x32_bf16 {a}, {vr(KF+16*t+4*ks,4)}, {vr(Q+4*ks,4)}, {a if ks else 0}')
    k.I(f'v_mov_b32 v76, {f32b(-1e9 / 128**-0.5):#x}')
    for t in range(2):
        for r in range(4):
            k.I(f'v_cmp_gt_i32 vcc, {16*t + r}, v{vDLT}\nv_cndmask_b32 v{S0+4*t+r}, v{S0+4*t+r}, v76, vcc')
    AC = dict(k0=52, k1=56, v0=60, v1=72)
    for a in AC.values(): k.I(f'v_mov_b64 {vr(a,2)}, 0\nv_mov_b64 {vr(a+2,2)}, 0')
    k.I(f's_add_u32 s{sT}, s{sMH}, 4096\ns_add_u32 s33, s{sMH}, 8192')
    k.label('L_pa_poll')
    for n in range(9):
        so = (sMH, sT, 33)[n // 4]
        k.I(f'buffer_load_dwordx4 {vr(MAf+4*n,4)}, v{vL16}, {ws}, s{so} offen offset:{(n%4)*1024} sc1')
    k.I(f's_sub_u32 s{sBUD}, s{sBUD}, 1\ns_cbranch_scc1 L_exit')
    k.I(f'v_max_u32 v76, v{MAf}, v{MAf+2}')
    for n in range(1, 9): k.I(f'v_max3_u32 v76, v76, v{MAf+4*n}, v{MAf+4*n+2}')
    k.I('v_cmp_eq_u32 vcc, -1, v76\ns_cbranch_vccnz L_pa_poll')
    for n in range(9):
        for m in 'KV':
            for u in range(2):
                k.I(f'v_smfmac_f32_16x16x64_bf16 {vr(AC[m.lower()+str(u)],4)}, {vr(MAf+4*n,4)}, {fr(WD[m,n][u])}, v{vIDX}')
    VF = 32
    for ks in range(4): k.I(f'ds_read_b128 {vr(Q+4*ks,4)}, v{vQR} offset:{ks*1024}')
    for u in range(2):
        ka, va = AC[f'k{u}'], AC[f'v{u}']
        k.I(f'''
        v_pk_add_f32 {vr(ka,2)}, {vr(ka,2)}, {vr(ka+2,2)}
        v_pk_add_f32 {vr(va,2)}, {vr(va,2)}, {vr(va+2,2)}
        v_cvt_pk_bf16_f32 v{76+2*u}, v{ka}, v{ka+1}
        v_cvt_pk_bf16_f32 v{77+2*u}, v{va}, v{va+1}
        ds_write_b64 v{vIMW}, {vr(76+2*u,2)} offset:{512*u}
        ''')
    for et in range(4): k.I(f'ds_read_b128 {vr(VF+4*et,4)}, v{vVR} offset:{(et&1)*4096 + (et>>1)*1024}')
    k.I(f's_and_b32 s{sT}, s{sW}, 1\ns_lshl_b32 s{sT}, s{sT}, 10\nv_subrev_u32 v{vKR}, s{sT}, v{vIMW}')
    k.wait(lg=4)
    k.I('s_barrier')
    KM, VM = 48, 12
    for ks in range(4):
        for u in range(2): k.I(f'ds_read_b64_tr_b16 {vr(KM+4*ks+2*u,2)}, v{vL8} offset:{ks*1024 + u*512}')
    for et in range(4): k.I(f'ds_read_b32 v{VM+et}, v{vKR} offset:{et*512 + 4}')
    SMm = 72
    for ks in range(4):
        k.I(f'v_mfma_f32_16x16x32_bf16 {vr(SMm,4)}, {vr(KM+4*ks,4)}, {vr(Q+4*ks,4)}, {vr(SMm,4) if ks else 0}')
    m, t = 76, 77
    k.I(f'''
    v_max3_f32 v{m}, v64, v65, v66
    v_max3_f32 v{m}, v{m}, v67, v68
    v_max3_f32 v{m}, v{m}, v69, v70
    v_max_f32 v{m}, v{m}, v71
    v_max3_f32 v{m}, v{m}, v72, v73
    ''')
    xlane_g(k, 'v_max_f32', m, t)
    k.I(f'v_mul_f32 v{m}, s{sC}, v{m}')
    for r in range(64, 74): k.I(f'v_fma_f32 v{r}, v{r}, s{sC}, -v{m}')
    for r in range(64, 74): k.I(f'v_exp_f32 v{r}, v{r}')
    k.I(f'v_add_f32 v{m}, v64, v65')
    for r in range(66, 74): k.I(f'v_add_f32 v{m}, v{m}, v{r}')
    xlane_g(k, 'v_add_f32', m, t)
    k.I(f'v_rcp_f32 v{m}, v{m}')
    for r in range(64, 74): k.I(f'v_mul_f32 v{r}, v{r}, v{m}')
    PB = 16
    for r in range(4): k.I(f'v_cvt_pk_bf16_f32 v{PB+r}, v{64+2*r}, v{65+2*r}')
    k.I(f'v_cvt_pk_bf16_f32 v20, v72, v73\nv_mov_b32 v21, 0\nv_mov_b32 v22, 0\nv_mov_b32 v23, v20')
    O = 48
    for et in range(4): k.I(f'v_mfma_f32_16x16x32_bf16 {vr(O+4*et,4)}, {vr(VF+4*et,4)}, {vr(PB,4)}, 0')
    for et in range(4):
        k.I(f'v_mfma_f32_16x16x16_bf16 {vr(O+4*et,4)}, {vr(VM+(et&2),2)}, {vr(20+2*(et&1),2)}, {vr(O+4*et,4)}')
    for mm in range(2):
        for r in range(4): k.I(f'v_cvt_pk_bf16_f32 v{24+4*mm+r}, v{O+8*mm+2*r}, v{O+8*mm+2*r+1}')
        k.I(f'buffer_store_dwordx4 {vr(24+4*mm,4)}, v{vL16}, {ws}, s{sO} offen offset:{mm*1024} sc1')
    signal(k, ws, f's{sOC}', 0, 76, vL0)
    k.I(f'''
    s_add_u32 s{sMH}, s{sMH}, {4*M_SLOT}
    s_add_u32 s{sO}, s{sO}, {4 << 18}
    s_add_u32 s{sOC}, s{sOC}, 512
    s_cmp_eq_u32 s{sST}, 0
    s_cselect_b32 s{sT}, 1, -1
    s_mul_i32 s{sT}, s{sT}, 24576
    s_add_u32 s{sST}, s{sST}, s{sT}
    v_add_u32 v{vQR}, s{sT}, v{vQR}
    v_add_u32 v{vVR}, s{sT}, v{vVR}
    s_cmp_lt_u32 s{sIT}, 16
    s_cbranch_scc1 L_pa_proj
    s_add_u32 s{sIT}, s{sIT}, 1
    s_cmp_eq_u32 s{sIT}, 17
    s_cbranch_scc1 L_pa_att
    s_branch L_exit
    ''')

def role_o(k, cfg):
    k.label('L_o'); k.reset()
    sCS, sLW, sT, sID, sO, sOC, sROW, sPAR = range(34, 42)
    sSEL = 44
    vL16, vEO, vTOK, vRW = 1, 2, 3, 4
    lane, c, g, t0, t1, t2 = 15, 14, 13, 12, 11, 10
    make_srds(k, [(S_A, 'Wo'), (S_B, 'x'), (S_C, 'out')])
    lane_consts(k, lane, c, g)
    vD, vTR = 5, 6
    k.I(f'''
    s_lshl_b32 s{sCS}, s{sSLOT}, 6
    s_sub_u32 s{sID}, s{sPOOL}, 5
    v_lshlrev_b32 v{vL16}, 4, v{lane}
    s_mul_i32 s{sLW}, s{sW}, 36864
    s_add_u32 s{sLW}, s{sLW}, 16384
    v_lshrrev_b32 v{t0}, 2, v{lane}
    v_mul_u32_u24 v{vD}, 1152, v{t0}
    v_and_b32 v{t1}, 3, v{lane}
    v_lshl_add_u32 v{vD}, v{t1}, 4, v{vD}
    s_mul_i32 s{sT}, s{sW}, {1024*1152}
    s_add_u32 s{sT}, s{sT}, s{sCS}
    v_add_u32 v{vD}, s{sT}, v{vD}
    v_lshrrev_b32 v{t0}, 2, v{c}
    v_lshl_add_u32 v{t0}, v{g}, 2, v{t0}
    v_lshlrev_b32 v{t0}, 6, v{t0}
    v_and_b32 v{t1}, 3, v{c}
    v_lshl_add_u32 v{vTR}, v{t1}, 4, v{t0}
    v_add_u32 v{vTR}, s{sLW}, v{vTR}
    v_mul_u32_u24 v{vEO}, 1152, v{c}
    v_lshl_add_u32 v{vEO}, v{g}, 4, v{vEO}
    v_add_u32 v{vEO}, s{sCS}, v{vEO}
    s_lshl_b32 s{sT}, s{sW}, 11
    v_add_u32 v{vRW}, s{sT}, v{vL16}
    s_mov_b32 s{sPAR}, 0
    ''')
    chunks = [dict(srd=S_A, vdma=f'v{vD}', soff=lambda i, n=n: f's_mov_b32 s{sT}, {(64*n + 16*i)*1152}', vtr=f'v{vTR}',
                   imm=lambda u, hf, sub: (32*hf + 16*sub)*64 + 8*u, dest=[('a', 16*n), ('a', 16*n + 8)]) for n in range(16)]
    load_chunks(k, chunks, sLW, sT, vL16, 56)
    spin_dbg(k, 'L_o_init', D_INIT, f's_cmp_ge_u32 s33, {N_INIT}')
    spin_dbg(k, 'L_o_mod', D_MOD2, 's_cmp_ge_u32 s33, 36')
    k.I(f'v_lshlrev_b32 v16, 2, v{lane}\ns_mov_b32 s{sT}, {WS_SEL:#x}')
    k.I(f'buffer_load_dword v17, v16, {ws}, s{sT} offen sc1')
    for i in range(8): k.I(f'v_readlane_b32 s{sSEL+i}, v17, {i}')
    k.label('L_o_task'); k.reset()
    X, U, G = 16, 20, 24
    k.I(f'''
    s_lshl_b32 s{sO}, s{sID}, 17
    s_lshl_b32 s{sT}, s{sW}, 15
    s_add_u32 s{sO}, s{sO}, s{sT}
    s_add_u32 s{sO}, s{sO}, {WS_O:#x}
    s_lshr_b32 s{sOC}, s{sID}, 1
    s_lshl_b32 s{sOC}, s{sOC}, 7
    s_add_u32 s{sOC}, s{sOC}, {F_OCNT:#x}
    s_mul_i32 s{sROW}, s{sID}, {16*1152}
    s_lshl_b32 s{sT}, s{sID}, 4
    v_add_u32 v{vTOK}, s{sT}, v{c}
    buffer_load_dwordx4 {vr(X,4)}, v{vEO}, {srd(S_B)}, s{sROW} offen
    v_lshlrev_b32 v{t0}, 2, v{vTOK}
    s_mov_b32 s{sT}, {WS_G:#x}
    buffer_load_dword v{G}, v{t0}, {ws}, s{sT} offen sc1
    v_mov_b32 v{t0}, {OOB:#x}
    v_lshlrev_b32 v{t1}, 4, v{g}
    v_add_u32 v{t1}, s{sCS}, v{t1}
    ''')
    for i in range(8):
        k.I(f'v_cmp_eq_u32 vcc, s{sSEL+i}, v{vTOK}\nv_cndmask_b32 v{t0}, v{t0}, v{t1}, vcc\nv_add_u32 v{t1}, 1152, v{t1}')
    k.I(f's_mov_b32 s{sT}, {WS_UPD:#x}\nbuffer_load_dwordx4 {vr(U,4)}, v{t0}, {ws}, s{sT} offen sc1')
    k.label('L_o_poll')
    k.I(f'''
    buffer_load_dword v{t2}, off, {ws}, s{sOC} sc1
    s_sub_u32 s{sBUD}, s{sBUD}, 1
    s_cbranch_scc1 L_exit
    s_waitcnt vmcnt(0)
    v_cmp_gt_u32 vcc, 32, v{t2}
    s_cbranch_vccnz L_o_poll
    ''')
    OF = 64
    for n in range(32):
        k.I(f'buffer_load_dwordx4 {vr(OF+4*n,4)}, v{vL16}, {ws}, s{sO} offen offset:{(n%4)*1024} sc1')
        if n % 4 == 3 and n < 31: k.I(f's_add_u32 s{sO}, s{sO}, 4096')
    AC = [32, 36]
    for n in range(32):
        for u in range(2):
            a = vr(AC[u], 4)
            k.I(f'v_mfma_f32_16x16x32_bf16 {a}, {vr(16*(n>>1) + 8*u + 4*(n&1), 4, "a")}, {vr(OF+4*n,4)}, {a if n else 0}')
    k.I(f'v_add_u32 v{t0}, s{sPAR}, v{vRW}')
    for u in range(2): k.I(f'ds_write_b128 v{t0}, {vr(AC[u],4)} offset:{u*1024}')
    k.wait(lg=0)
    k.I(f'''
    s_barrier
    s_cmp_lg_u32 s{sW}, 0
    s_cbranch_scc1 L_o_next
    ''')
    for w in range(1, 4):
        for u in range(2): k.I(f'ds_read_b128 {vr(40+8*(w-1)+4*u,4)}, v{t0} offset:{w*2048 + u*1024}')
    for j in range(4):
        k.I(f'''
        v_lshlrev_b32 v{64+2*j}, 16, v{X+j}
        v_and_b32 v{65+2*j}, 0xffff0000, v{X+j}
        v_lshlrev_b32 v{72}, 16, v{U+j}
        v_and_b32 v{73}, 0xffff0000, v{U+j}
        v_add_f32 v{64+2*j}, v{64+2*j}, v72
        v_add_f32 v{65+2*j}, v{65+2*j}, v73
        ''')
    k.I(f'v_sub_f32 v{G+1}, 1.0, v{G}')
    rnd_bf16(k, [(64+2*j, 65+2*j) for j in range(4)] + [(G, G+1)], 72)
    for j in range(8): k.I(f'v_mul_f32 v{64+j}, v{64+j}, v{G+1}')
    rnd_bf16(k, [(64+2*j, 65+2*j) for j in range(4)], 72)
    for w in range(3):
        for j in range(0, 8, 2): k.I(f'v_pk_add_f32 {vr(32+j,2)}, {vr(32+j,2)}, {vr(40+8*w+j,2)}')
    rnd_bf16(k, [(32+2*j, 33+2*j) for j in range(4)], 72)
    for j in range(8): k.I(f'v_mul_f32 v{32+j}, v{32+j}, v{G}')
    rnd_bf16(k, [(32+2*j, 33+2*j) for j in range(4)], 72)
    for j in range(0, 8, 2): k.I(f'v_pk_add_f32 {vr(32+j,2)}, {vr(32+j,2)}, {vr(64+j,2)}')
    for j in range(4): k.I(f'v_cvt_pk_bf16_f32 v{28+j}, v{32+2*j}, v{33+2*j}')
    k.I(f'buffer_store_dwordx4 v[28:31], v{vEO}, {srd(S_C)}, s{sROW} offen')
    k.label('L_o_next')
    k.I(f'''
    s_xor_b32 s{sPAR}, s{sPAR}, 8192
    s_add_u32 s{sID}, s{sID}, 3
    s_cmp_lt_u32 s{sID}, 128
    s_cbranch_scc1 L_o_task
    s_branch L_exit
    ''')

def sigmoid(k, d, z):
    k.I(f'v_mul_f32 v{d}, {f32b(-LOG2E):#x}, v{z}\nv_exp_f32 v{d}, v{d}\nv_add_f32 v{d}, 1.0, v{d}\nv_rcp_f32 v{d}, v{d}')

def role_mod(k, cfg):
    k.label('L_mod'); k.reset()
    sM, sLW, sT = 34, 35, 36
    vL16, vIDX, vL0, vSEL, vK0, vK1, vL8 = 1, 2, 3, 4, 5, 6, 7
    lane, c, g, t0, t1, t2 = 15, 14, 13, 12, 11, 10
    make_srds(k, [(S_A, 'wr'), (S_B, 'gw'), (S_D, 'x')])
    lane_consts(k, lane, c, g)
    k.I(f'''
    s_sub_u32 s{sM}, s{sPOOL}, 5
    s_mul_i32 s{sM}, s{sM}, 12
    s_add_u32 s{sM}, s{sM}, s{sSLOT}
    s_sub_u32 s{sM}, s{sM}, 18
    v_lshlrev_b32 v{vL16}, 4, v{lane}
    v_lshlrev_b32 v{vL8}, 3, v{lane}
    ''')
    sparse_idx(k, vIDX, lane, t0, t1)
    lane0_off(k, vL0, lane)
    k.I(f's_cmp_ge_u32 s{sM}, 32\ns_cbranch_scc1 L_mod_w')
    XF, RF, GF = 16, 88, 160
    k.I(f'''
    v_mul_u32_u24 v{t0}, 1152, v{c}
    v_lshl_add_u32 v{t0}, v{g}, 4, v{t0}
    v_lshlrev_b32 v{t1}, 4, v{g}
    s_lshl_b32 s{sT}, s{sM}, 2
    s_add_u32 s{sT}, s{sT}, s{sW}
    s_mul_i32 s33, s{sT}, {16*1152}
    ''')
    for ks in range(18):
        k.I(f'buffer_load_dwordx4 {vr(XF+4*ks,4)}, v{t0}, {srd(S_D)}, s33 offen offset:{ks*64}')
        k.I(f'buffer_load_dwordx4 {vr(RF+4*ks,4)}, v{t1}, {srd(S_A)}, 0 offen offset:{ks*64}')
        k.I(f'buffer_load_dwordx4 {vr(GF+4*ks,4)}, v{t1}, {srd(S_B)}, 0 offen offset:{ks*64}')
    ONE, DR, DG = 232, 236, 240
    for r in range(4): k.I(f'v_mov_b32 v{ONE+r}, 0x3f803f80')
    for ks in range(18):
        k.I(f'v_mfma_f32_16x16x32_bf16 {vr(DR,4)}, {vr(RF+4*ks,4)}, {vr(XF+4*ks,4)}, {vr(DR,4) if ks else 0}')
        for j in range(4):
            x, gw = XF+4*ks+j, GF+4*ks+j
            k.I(f'''
            v_lshlrev_b32 v244, 16, v{x}
            v_lshlrev_b32 v245, 16, v{gw}
            v_and_b32 v246, 0xffff0000, v{x}
            v_and_b32 v247, 0xffff0000, v{gw}
            v_mul_f32 v244, v244, v245
            v_mul_f32 v246, v246, v247
            v_cvt_pk_bf16_f32 v{gw}, v244, v246
            ''')
        k.I(f'v_mfma_f32_16x16x32_bf16 {vr(DG,4)}, {vr(ONE,4)}, {vr(GF+4*ks,4)}, {vr(DG,4) if ks else 0}')
    rnd_bf16(k, [(DG, DR)], 244)
    sigmoid(k, 245, DG)
    rnd_bf16(k, [(245, 246)], 244)
    k.I(f'''
    v_ashrrev_i32 v246, 31, v{DR}
    v_or_b32 v246, 0x80000000, v246
    v_xor_b32 v246, v246, v{DR}
    v_and_b32 v246, 0xffff0000, v246
    s_lshl_b32 s{sT}, s{sT}, 4
    v_add_u32 v247, s{sT}, v{c}
    v_sub_u32 v248, 0xffff, v247
    v_or_b32 v246, v246, v248
    v_lshlrev_b32 v247, 2, v247
    v_lshl_add_u32 v247, v{g}, 28, v247
    s_mov_b32 s{sT}, {WS_G:#x}
    buffer_store_dword v245, v247, {ws}, s{sT} offen sc1
    s_mov_b32 s{sT}, {WS_R:#x}
    buffer_store_dword v246, v247, {ws}, s{sT} offen sc1
    ''')
    signal(k, srd(S_DBG), 0, D_RS, 244, vL0)
    k.label('L_mod_w'); k.reset()
    if cfg.get('mod_wait', 1): spin_dbg(k, 'L_mod_ld', D_LOADED, 's_cmp_ge_u32 s33, 32')
    make_srds(k, [(S_A, 'wg'), (S_B, 'wu'), (S_C, 'wd')])
    vD, vDO, vDOo, vTN, vTO, vTOo = 40, 41, 42, 43, 44, 45
    k.I(f'''
    s_mul_i32 s{sLW}, s{sW}, 36864
    s_add_u32 s{sLW}, s{sLW}, 16384
    v_lshrrev_b32 v{t0}, 2, v{lane}
    v_and_b32 v{t1}, 3, v{lane}
    v_lshlrev_b32 v{t1}, 4, v{t1}
    v_mul_u32_u24 v{vD}, 9216, v{t0}
    v_add_u32 v{vD}, v{vD}, v{t1}
    s_lshl_b32 s{sT}, s{sM}, 8
    s_lshl_b32 s33, s{sW}, 6
    s_add_u32 s{sT}, s{sT}, s33
    v_add_u32 v{vD}, s{sT}, v{vD}
    v_mul_u32_u24 v{vDO}, 1152, v{t0}
    v_add_u32 v{vDO}, v{vDO}, v{t1}
    s_mul_i32 s{sT}, s{sM}, 147456
    s_add_u32 s33, s33, s{sT}
    v_add_u32 v{vDO}, s33, v{vDO}
    v_lshrrev_b32 v{t0}, 1, v{lane}
    v_mul_u32_u24 v{vDOo}, 1152, v{t0}
    v_and_b32 v{t1}, 1, v{lane}
    v_lshl_add_u32 v{vDOo}, v{t1}, 4, v{vDOo}
    s_lshl_b32 s33, s{sW}, 5
    s_add_u32 s{sT}, s{sT}, s33
    s_add_u32 s{sT}, s{sT}, 1024
    v_add_u32 v{vDOo}, s{sT}, v{vDOo}
    v_lshrrev_b32 v{t0}, 2, v{c}
    v_and_b32 v{t1}, 3, v{c}
    v_lshl_add_u32 v{t2}, v{g}, 3, v{t0}
    v_lshlrev_b32 v{t2}, 6, v{t2}
    v_lshl_add_u32 v{vTN}, v{t1}, 3, v{t2}
    v_add_u32 v{vTN}, s{sLW}, v{vTN}
    v_lshrrev_b32 v46, 1, v{t0}
    v_lshlrev_b32 v{t2}, 4, v46
    v_lshl_add_u32 v{t2}, v{g}, 2, v{t2}
    v_and_b32 v46, 1, v{t0}
    v_add_u32 v{t2}, v{t2}, v46
    v_lshlrev_b32 v46, 6, v{t2}
    v_lshl_add_u32 v{vTO}, v{t1}, 3, v46
    v_add_u32 v{vTO}, s{sLW}, v{vTO}
    v_lshlrev_b32 v46, 5, v{t2}
    v_lshl_add_u32 v{vTOo}, v{t1}, 3, v46
    v_add_u32 v{vTOo}, s{sLW}, v{vTOo}
    ''')
    WD = {}; chunks = []
    for n in range(9):
        for m, sr in (('G', S_A), ('U', S_B)):
            d = wdest27(len(chunks)); WD[m, n] = d
            chunks.append(dict(srd=sr, vdma=f'v{vD}', soff=lambda i, n=n: f's_mov_b32 s{sT}, {(64*n + 16*i)*9216}', vtr=f'v{vTN}',
                               imm=lambda u, hf, sub: (32*hf + 4*sub)*64 + 32*u, dest=d))
    for pi in range(4):
        for kp in range(2):
            d = wdest27(len(chunks)); WD['D', pi, kp] = d
            chunks.append(dict(srd=S_C, vdma=f'v{vDO}', soff=lambda i, pi=pi, kp=kp: f's_mov_b32 s{sT}, {(64*kp + 16*i)*1152 + pi*256}',
                               vtr=f'v{vTO}', imm=lambda u, hf, sub: (32*hf + 2*sub)*64 + 32*u, dest=d))
    d = wdest27(len(chunks)); WD['Do'] = d
    chunks.append(dict(srd=S_C, vdma=f'v{vDOo}', soff=lambda i: f's_mov_b32 s{sT}, {32*i*1152}', vtr=f'v{vTOo}',
                       imm=lambda u, hf, sub: (64*u + 32*hf + 2*sub)*32, dest=d))
    load_chunks(k, chunks, sLW, sT, vL16, 56)
    spin_dbg(k, 'L_mod_rs', D_RS, 's_cmp_ge_u32 s33, 32')
    KY = 16
    k.I(f's_mov_b32 s{sT}, {WS_R:#x}\ns_mov_b32 s33, {WS_R + 4096:#x}')
    for i in range(8):
        k.I(f'buffer_load_dwordx4 {vr(KY+4*i,4)}, v{vL16}, {ws}, s{sT if i < 4 else 33} offen offset:{(i%4)*1024} sc1')
    k.I(f'''
    v_lshrrev_b32 v{t0}, 2, v{c}
    v_and_b32 v{t1}, 1, v{c}
    v_lshl_add_u32 v50, v{t0}, 1, v{t1}
    v_lshlrev_b32 v51, 1, v{g}
    v_add_u32 v52, 1, v51
    v_mov_b32 v{vSEL}, 0
    v_mov_b32 v{vK0}, 0
    v_mov_b32 v{vK1}, 0
    v_mov_b32 v53, 0
    s_mov_b32 s37, 0
    ''')
    k.wait(vm=0)
    k.label('L_mod_top'); k.reset()
    k.I(f'v_max3_u32 v48, v{KY}, v{KY+1}, v{KY+2}')
    for i in range(3, 31, 2): k.I(f'v_max3_u32 v48, v48, v{KY+i}, v{KY+i+1}')
    k.I(f'v_max_u32 v48, v48, v{KY+31}')
    for r in (8, 4, 2, 1): k.I(f'v_max_u32_dpp v48, v48, v48 row_ror:{r} row_mask:0xf bank_mask:0xf')
    xlane_g(k, 'v_max_u32', 48, 49)
    for i in range(32): k.I(f'v_cmp_ne_u32 vcc, v48, v{KY+i}\nv_cndmask_b32 v{KY+i}, 0, v{KY+i}, vcc')
    for dst, sel in ((vSEL, 50), (vK0, 51), (vK1, 52), (53, lane)):
        k.I(f'v_cmp_eq_u32 vcc, s37, v{sel}\nv_cndmask_b32 v{dst}, v{dst}, v48, vcc')
    k.I('s_add_u32 s37, s37, 1\ns_cmp_lt_u32 s37, 8\ns_cbranch_scc1 L_mod_top')
    k.I(f'''
    v_and_b32 v53, 0xffff, v53
    v_sub_u32 v53, 0xffff, v53
    v_lshrrev_b32 v{t0}, 3, v{lane}
    v_min_u32 v{t0}, 1, v{t0}
    v_lshlrev_b32 v{t0}, 30, v{t0}
    v_lshl_add_u32 v{t0}, v{lane}, 2, v{t0}
    s_mov_b32 s{sT}, {WS_SEL:#x}
    buffer_store_dword v53, v{t0}, {ws}, s{sT} offen sc1
    v_and_b32 v{vSEL}, 0xffff, v{vSEL}
    v_sub_u32 v{vSEL}, 0xffff, v{vSEL}
    v_mul_u32_u24 v{t0}, 1152, v{vSEL}
    v_lshl_add_u32 v{t0}, v{g}, 5, v{t0}
    v_and_b32 v{t1}, 2, v{lane}
    v_lshl_add_u32 v{t0}, v{t1}, 1, v{t0}
    ''')
    MAf = 16
    for n in range(9):
        for q in range(4): k.I(f'buffer_load_dword v{MAf+4*n+q}, v{t0}, {srd(S_D)}, 0 offen offset:{n*128 + q*8}')
    AC = dict(g0=52, g1=56, u0=60, u1=64)
    for a in AC.values(): k.I(f'v_mov_b64 {vr(a,2)}, 0\nv_mov_b64 {vr(a+2,2)}, 0')
    for n in range(9):
        for m in 'GU':
            for u in range(2):
                k.I(f'v_smfmac_f32_16x16x64_bf16 {vr(AC[m.lower()+str(u)],4)}, {vr(MAf+4*n,4)}, {fr(WD[m,n][u])}, v{vIDX}')
    for a in AC.values(): k.I(f'v_pk_add_f32 {vr(a,2)}, {vr(a,2)}, {vr(a+2,2)}')
    rnd_bf16(k, [(a, a+1) for a in AC.values()], 68)
    for u in range(2):
        ga, ua = AC[f'g{u}'], AC[f'u{u}']
        for j in range(2):
            sigmoid(k, 69, ga + j); k.I(f'v_mul_f32 v{ga+j}, v{ga+j}, v69')
        rnd_bf16(k, [(ga, ga+1)], 68)
        k.I(f'v_mul_f32 v{ga}, v{ga}, v{ua}\nv_mul_f32 v{ga+1}, v{ga+1}, v{ua+1}\nv_cvt_pk_bf16_f32 v{70+u}, v{ga}, v{ga+1}')
    k.I(f'''
    v_lshlrev_b32 v{t0}, 5, v{c}
    v_lshl_add_u32 v{t0}, v{g}, 3, v{t0}
    s_lshl_b32 s{sT}, s{sW}, 9
    v_add_u32 v{t0}, s{sT}, v{t0}
    ds_write_b64 v{t0}, v[70:71]
    v_lshlrev_b32 v{t1}, 8, v{g}
    v_lshl_add_u32 v{t1}, v{c}, 3, v{t1}
    ''')
    for a in range(16, 52, 2): k.I(f'v_mov_b64 {vr(a,2)}, 0')
    k.wait(lg=0)
    k.I('s_barrier')
    HA = 72
    for kp in range(2):
        for sub in range(2): k.I(f'ds_read_b64_tr_b16 {vr(HA+4*kp+2*sub,2)}, v{t1} offset:{kp*1024 + sub*128}')
    tiles = []
    for pi in range(4):
        for u in range(2):
            a = 16 + 4*(2*pi + u); tiles.append((a, (8*pi + u)*36*512))
            for kp in range(2): k.I(f'v_smfmac_f32_16x16x64_bf16 {vr(a,4)}, {vr(HA+4*kp,4)}, {fr(WD["D",pi,kp][u])}, v{vIDX}')
    for kp in range(2): k.I(f'v_smfmac_f32_16x16x64_bf16 v[48:51], {vr(HA+4*kp,4)}, {fr(WD["Do"][kp])}, v{vIDX}')
    k.I(f's_lshl_b32 s37, s{sM}, 9\ns_add_u32 s37, s37, {WS_MP:#x}\ns_mul_i32 s38, s{sW}, {2*36*512}\ns_add_u32 s38, s38, s37')
    for a, off in tiles:
        k.I(f'v_pk_add_f32 {vr(a,2)}, {vr(a,2)}, {vr(a+2,2)}\ns_add_u32 s{sT}, s38, {off}')
        k.I(f'buffer_store_dwordx2 {vr(a,2)}, v{vL8}, {ws}, s{sT} offen sc1')
    k.I(f'v_pk_add_f32 v[48:49], v[48:49], v[50:51]\ns_mul_i32 s{sT}, s{sW}, {36*512}\ns_add_u32 s{sT}, s{sT}, s37\ns_add_u32 s{sT}, s{sT}, {32*36*512}')
    k.I(f'buffer_store_dwordx2 v[48:49], v{vL8}, {ws}, s{sT} offen sc1')
    signal(k, srd(S_DBG), 0, D_MOD1, 68, vL0)
    k.I(f's_cmp_lg_u32 s{sW}, 0\ns_cbranch_scc1 L_exit')
    spin_dbg(k, 'L_mod_m1', D_MOD1, 's_cmp_ge_u32 s33, 36')
    k.I(f's_mul_i32 s{sT}, s{sM}, {36*512}\ns_add_u32 s{sT}, s{sT}, {WS_MP:#x}')
    for i in range(36):
        k.I(f'buffer_load_dwordx2 {vr(80+2*i,2)}, v{vL8}, {ws}, s{sT} offen offset:{(i%8)*512} sc1')
        if i % 8 == 7: k.I(f's_add_u32 s{sT}, s{sT}, 4096')
    for kk in (vK0, vK1):
        k.I(f'''
        v_and_b32 v{kk}, 0xffff0000, v{kk}
        v_ashrrev_i32 v16, 31, v{kk}
        v_not_b32 v16, v16
        v_or_b32 v16, 0x80000000, v16
        v_xor_b32 v{kk}, v{kk}, v16
        v_and_b32 v{kk}, 0xffff0000, v{kk}
        ''')
        sigmoid(k, kk, kk)
    rnd_bf16(k, [(vK0, vK1)], 16)
    for i in range(1, 36): k.I(f'v_pk_add_f32 v[80:81], v[80:81], {vr(80+2*i,2)}')
    rnd_bf16(k, [(80, 81)], 16)
    k.I(f'''
    v_mul_f32 v80, v80, v{vK0}
    v_mul_f32 v81, v81, v{vK1}
    v_cvt_pk_bf16_f32 v80, v80, v81
    v_mul_u32_u24 v{t0}, 2304, v{g}
    v_lshl_add_u32 v{t0}, v{c}, 1, v{t0}
    s_lshl_b32 s{sT}, s{sM}, 5
    s_add_u32 s{sT}, s{sT}, {WS_UPD:#x}
    buffer_store_short v80, v{t0}, {ws}, s{sT} offen sc1
    buffer_store_short_d16_hi v80, v{t0}, {ws}, s{sT} offen offset:1152 sc1
    s_waitcnt vmcnt(0)
    v_mov_b32 v16, 1
    buffer_atomic_add v16, v{vL0}, {srd(S_DBG)}, 0 offen offset:{D_MOD2}
    s_branch L_exit
    ''')

def dispatch_roles(k, cfg):
    k.I(f'''
    s_cmp_lt_u32 s{sPOOL}, 5
    s_cbranch_scc1 L_pa
    s_cmp_ge_u32 s{sPOOL}, 8
    s_cbranch_scc1 L_exit
    s_cmp_lt_u32 s{sSLOT}, 18
    s_cbranch_scc1 L_o
    s_cmp_lt_u32 s{sSLOT}, 30
    s_cbranch_scc1 L_mod
    s_branch L_init
    ''')
def bodies(k, cfg):
    for f in (role_init, role_pa, role_o, role_mod):
        k.raw('.p2align 6')
        f(k, cfg)
```

```python
import sys
from common import *
import chain, roles

KNAME = 'gated_mix__memory_aug_recurrent_mem_tr__moe_arch_mod__prompt_kernel'
HDR = open('gated_mix__memory_aug_recurrent_mem_tr__moe_arch_mod__prompt.s.ref').read().split('; Override launch')[0]

def dispatch(k, cfg):
    if cfg.get('stamps'): k.raw('  s_memtime s[98:99]')
    k.I('s_cmp_ge_u32 s2, 256')
    k.I('s_cbranch_scc1 L_exit')
    k.I(f's_load_dwordx16 s[{S_KA}:{S_KA+15}], s[0:1], 0')
    k.I(f's_load_dwordx16 s[{S_KA+16}:{S_KA+31}], s[0:1], 64')
    k.wait(lg=0)
    make_srds(k, [(S_WS, 'ws'), (S_DBG, 'dbg')])
    k.I(f'''
    v_lshrrev_b32 v1, 6, v0
    v_and_b32 v0, 63, v0
    v_readfirstlane_b32 s{sW}, v1
    s_getreg_b32 s33, hwreg(HW_REG_XCC_ID)
    s_and_b32 s33, s33, 7
    s_mov_b32 s{sBUD}, {BUDGET}
    v_mov_b32 v3, 0
    ''')
    if cfg.get('force_foreign'):
        k.I('s_lshr_b32 s33, s2, 5')
    k.I(f'''
    s_cmp_lg_u32 s{sW}, 0
    s_cbranch_scc1 L_claimed
    s_mov_b32 s34, 0
    ''')
    k.label('L_claim')
    k.I(f'''
    s_add_u32 s35, s33, s34
    s_and_b32 s35, s35, 7
    s_lshl_b32 s36, s35, 2
    v_lshl_add_u32 v1, v0, 8, s36
    v_mov_b32 v2, 1
    buffer_atomic_add v2, v1, {srd(S_DBG)}, 0 offen sc0
    v_readfirstlane_b32 s36, v2
    s_cmp_lt_u32 s36, 32
    s_cbranch_scc1 L_got
    s_add_u32 s34, s34, 1
    s_cmp_lt_u32 s34, 8
    s_cbranch_scc1 L_claim
    s_mov_b32 s35, 8
    s_mov_b32 s36, 0
    ''')
    k.label('L_got')
    k.I(f'''
    s_lshl_b32 s35, s35, 8
    s_or_b32 s35, s35, s36
    s_lshl_b32 s34, s34, 16
    s_or_b32 s35, s35, s34
    v_mov_b32 v2, s35
    ds_write_b32 v3, v2
    s_waitcnt lgkmcnt(0)
    ''')
    k.label('L_claimed')
    k.reset()
    k.I(f'''
    s_barrier
    ds_read_b32 v2, v3
    v_readfirstlane_b32 s33, v2
    s_and_b32 s{sSLOT}, s33, 0xff
    s_bfe_u32 s{sPOOL}, s33, 0x80008
    s_lshr_b32 s{sFOREIGN}, s33, 16
    s_min_u32 s{sFOREIGN}, s{sFOREIGN}, 1
    s_barrier
    ''')
    if cfg.get('force_foreign'): k.I(f's_mov_b32 s{sFOREIGN}, 1')

def gen(cfg):
    k = K()
    dispatch(k, cfg)
    k.I(f's_cmp_eq_u32 s{sPOOL}, 0')
    k.I('s_cbranch_scc1 L_chain')
    if cfg.get('roles'):
        cfg['roles'](k, cfg)
    k.label('L_exit')
    k.raw('  s_endpgm')
    k.reset()
    k.label('L_chain')
    chain.chain_prologue(k, cfg)
    for md, st in (('f', ''), ('s', 'sc1')):
        for w in range(4):
            k.raw('.p2align 6')
            chain.chain_loop(k, f'L_c{md}{w}', st, cfg, w)
    if cfg.get('bodies'):
        cfg['bodies'](k, cfg)
    head = HDR + f'''; @launch grid=(256,1,1) block=(256,1,1) lds=163840
.amdgcn_target "amdgcn-amd-amdhsa--gfx950"
.text
.globl {KNAME}
.p2align 8
.type {KNAME},@function
{KNAME}:
'''
    tail = f'''.section .rodata,"a"
.p2align 6
.amdhsa_kernel {KNAME}
  .amdhsa_next_free_vgpr 512
  .amdhsa_next_free_sgpr 102
  .amdhsa_accum_offset 256
  .amdhsa_group_segment_fixed_size 0
  .amdhsa_kernarg_size 128
  .amdhsa_user_sgpr_count 2
  .amdhsa_user_sgpr_kernarg_segment_ptr 1
  .amdhsa_system_sgpr_workgroup_id_x 1
.end_amdhsa_kernel
'''
    return head + k.text() + tail, k

DEFAULT = dict(d1=[160,224,256,288], d2=[0]*4, syr=4, vps=[1]*6+[2,2,1,2]*3, mg=(15,15), roles=roles.dispatch_roles, bodies=roles.bodies)
OUT = 'gated_mix__memory_aug_recurrent_mem_tr__moe_arch_mod__prompt.s'
if __name__ == '__main__':
    txt, k = gen(DEFAULT)
    open(OUT, 'w').write(txt)
    print('lines', len(k.out), 'nops', k.nops_inserted)
```

```python
from common import *
import numpy as np
def np_f32_bits(x): return int(np.float32(x).view(np.uint32))

L_MA, L_S, L_R5, L_X2, L_Z, L_W = 0, 8192, 12288, 13312, 15360, 16384
vL16, vIDX, vLW, vPST, vPSO, vRST, vLAND, vX1W, vX1R, vX2W, vTM, vNEG1 = range(12)
RD = 12
ACC = dict(q0=16, q1=20, k0=24, k1=28, v0=64, v1=68)
VX = 32
MA = [40, 44, 48, 52]
WR = [56, 64]
KX = 72
sH, sSTEP, sLW, sT, sEX = 34, 35, 36, 37, 38
sP0, sPU, sPX = 40, 44, 45
sEXM = 46
sMC, sMU, sMX = 48, 49, 50
sMRU, sMRX = 51, 52
sU64, sX64 = 53, 54
sKVX, sKVXN, sMHU, sFKVX, sMHX = 55, 56, 57, 58, 59
sMSK = 60
sC = 70
sSY = 71
sVAL = 72
sML, sM8 = 74, 75
sFLG = 76
sT2 = 78
sFO = 3
sINC = 77
NSTEP = 63

LDS_CH = ['Q0', 'Q2', 'Q4', 'Q6', 'Q8', 'O00', 'O11', 'O31', 'Oo']
RING0 = (27 % 8)

def weight_map():
    names = [f'{m}{n}' for n in range(9) for m in 'QKV'] + [f'O{i}{kp}' for i in range(4) for kp in range(2)] + ['Oo']
    regch = [n for n in names if n not in LDS_CH]
    assert len(regch) == 27
    dest = {}
    for i, n in enumerate(regch):
        if i < 16: dest[n] = [('a', 16*i), ('a', 16*i + 8)]
        else: dest[n] = [('v', 80 + 16*(i-16)), ('v', 88 + 16*(i-16))]
    return regch, dest
REGCH, WDEST = weight_map()

def W(name, u):
    kind, base = WDEST[name][u]; return vr(base, 8, kind)
def lds_frag_reads(name, u, reg, w):
    if name == 'Oo': base = 0 if w % 2 == 0 else 61440
    else: base = ((RING0 + LDS_CH.index(name)) % 8)*8192 + (4096 if w % 2 == 0 else 0)
    return [f'ds_read_b128 {vr(reg + 4*hf, 4)}, v{vLW} offset:{base + u*2048 + hf*1024}' for hf in range(2)]
def SM(acc, A, B): return f'v_smfmac_f32_16x16x64_bf16 {vr(acc,4)}, {vr(A,4)}, {B}, v{vIDX}'

def chain_prologue(k, cfg):
    k.comment('==== chain prologue')
    ws = srd(S_WS)
    make_srds(k, [(S_A, 'Wq'), (S_B, 'Wk'), (S_C, 'Wv'), (S_D, 'Wo')])
    lane, c, g, t0, t1, t2 = 79, 78, 77, 76, 75, 74
    vDOo, vTOo, vA0 = 48, 49, 50
    sPB, sOB = 39, 78
    k.I(f'''
    s_mov_b32 s{sH}, s{sSLOT}
    v_mov_b32 v{lane}, v0
    v_and_b32 v{c}, 15, v{lane}
    v_lshrrev_b32 v{g}, 4, v{lane}
    v_lshlrev_b32 v{vL16}, 4, v{lane}
    s_lshl_b32 s{sOB}, s{sH}, 8
    ''')
    L = PairLoader(k, lane, c, g, (t0, t1, t2), range(40, 48), sPB, sLW, sT, L_W + 4096, 73728, 8)
    L.src('nat', 8192, sOB)
    def marks(c):
        lm = cfg.get('lmarks')
        if lm and c in lm: k.raw(f'  s_memtime s[{80+2*lm.index(c)}:{81+2*lm.index(c)}]')
    stages = []
    for name in REGCH + LDS_CH[:8]:
        if name[0] in 'QKV': stages.append(dict(kind='nat', srd=dict(Q=S_A, K=S_B, V=S_C)[name[0]], off=int(name[1])*64*8192, stride=8192, dest=WDEST.get(name)))
        else: stages.append(dict(kind='perm', srd=S_D, off=64*int(name[2])*1152 + int(name[1])*256, stride=1152, ustep=8, dest=WDEST.get(name)))
    marks(-2)
    L.start(stages, 3)
    k.I(f'''
    s_lshl_b32 s{sT}, s{sFOREIGN}, 16
    s_add_u32 s{sT}, s{sT}, 1
    v_mov_b32 v16, s{sT}
    s_lshl_b32 s{sT}, s{sW}, 6
    v_add_u32 v{vA0}, s{sT}, v{lane}
    v_lshlrev_b32 v{vA0}, 8, v{vA0}
    buffer_atomic_add v16, v{vA0}, {srd(S_DBG)}, 0 offen offset:{D_CHAIN}
    s_mul_i32 s{sOB}, s{sH}, 147456
    ''')
    L.src('perm', 1152, sOB)
    L.rd_nat()
    k.I(f'''
    ; odd: (l>>1)*1152 + (l&1)*16 + h*147456 + 1024 + w*32
    v_lshrrev_b32 v{t0}, 1, v{lane}
    v_mul_u32_u24 v{vDOo}, 1152, v{t0}
    v_and_b32 v{t1}, 1, v{lane}
    v_lshl_add_u32 v{vDOo}, v{t1}, 4, v{vDOo}
    s_lshl_b32 s33, s{sW}, 5
    s_add_u32 s{sT}, s{sOB}, s33
    s_add_u32 s{sT}, s{sT}, 1024
    v_add_u32 v{vDOo}, s{sT}, v{vDOo}
    s_and_b32 s33, s{sW}, 1
    s_mul_i32 s{sOB}, s33, {65536 + 4096}
    s_add_u32 s{sOB}, s{sOB}, s{sPB}
    s_sub_u32 s{sOB}, s{sOB}, 4096
    s_lshl_b32 s{sT}, s33, 13
    s_add_u32 s{sT}, s{sT}, s{sPB}
    s_sub_u32 s{sT}, s{sT}, 4096
    v_add_u32 v{vLW}, s{sT}, v{vL16}
    v_and_b32 v{t2}, 1, v{g}
    v_lshlrev_b32 v{t2}, 4, v{t2}
    v_lshrrev_b32 v{t0}, 1, v{g}
    v_lshl_add_u32 v{t2}, v{t0}, 3, v{t2}
    v_lshrrev_b32 v{t0}, 3, v{c}
    v_lshl_add_u32 v{t2}, v{t0}, 2, v{t2}
    v_bfe_u32 v{t0}, v{c}, 2, 1
    v_add_u32 v{t2}, v{t2}, v{t0}
    v_lshlrev_b32 v{t0}, 5, v{t2}
    v_and_b32 v{t1}, 3, v{c}
    v_lshl_add_u32 v{vTOo}, v{t1}, 3, v{t0}
    v_add_u32 v{vTOo}, s{sOB}, v{vTOo}
    ''')
    L.rd_perm(t2, 4)
    for i in range(4):
        k.I(f's_add_u32 m0, s{sOB}, {i*1024}')
        k.I(f's_mov_b32 s{sT}, {32*i*1152}')
        k.I(f"buffer_load_dwordx4 v{vDOo}, {srd(S_D)}, s{sT} offen lds")
    TMP = 56
    def hook(ci):
        marks(ci)
        if ci == 0:
            k.I(f'''
    s_lshl_b32 s{sU64}, s{sW}, 5
    s_add_u32 s{sU64}, s{sU64}, s{sH}
    s_lshl_b32 s{sU64}, s{sU64}, 6
    s_lshr_b32 s{sX64}, s{sH}, 1
    s_add_u32 s{sX64}, s{sX64}, 128
    s_lshl_b32 s{sX64}, s{sX64}, 6
    s_and_b32 s{sEX}, s{sH}, 1
    v_mov_b32 v{vNEG1}, -1
    v_mov_b32 v{vIDX}, 0x4444
    v_mov_b32 v{t0}, 0xeeee
    v_and_b32 v{t1}, 2, v{lane}
    v_cmp_ne_u32 vcc, 0, v{t1}
    v_cndmask_b32 v{vIDX}, v{vIDX}, v{t0}, vcc
    v_lshrrev_b32 v{t0}, 3, v{c}
    v_lshl_add_u32 v{t0}, v{t0}, 2, v{g}
    v_lshlrev_b32 v{t0}, 11, v{t0}
    v_and_b32 v{t1}, 7, v{c}
    v_lshl_add_u32 v{vPST}, v{t1}, 3, v{t0}
    s_lshl_b32 s{sT}, s{sW}, 14
    s_lshl_b32 s33, s{sH}, 6
    s_add_u32 s{sT}, s{sT}, s33
    v_add_u32 v{vPST}, s{sT}, v{vPST}
    v_and_b32 v{t0}, 8, v{c}
    v_and_b32 v{t1}, 3, v{c}
    v_lshl_add_u32 v{t0}, v{t1}, 1, v{t0}
    v_bfe_u32 v{t1}, v{c}, 2, 1
    v_add_u32 v{t0}, v{t0}, v{t1}
    v_lshlrev_b32 v{t0}, 2, v{t0}
    v_lshl_add_u32 v{vPSO}, v{g}, 11, v{t0}
    s_lshl_b32 s{sT}, s{sW}, 13
    s_add_u32 s{sT}, s{sT}, s33
    s_add_u32 s{sT}, s{sT}, {128*2048}
    v_add_u32 v{vPSO}, s{sT}, v{vPSO}
    v_and_b32 v{t0}, 1, v{c}
    v_lshl_add_u32 v{t0}, v{t0}, 1, v{g}
    v_lshlrev_b32 v{t0}, 4, v{t0}
    v_bfe_u32 v{t1}, v{c}, 1, 1
    v_lshl_add_u32 v{vRST}, v{t1}, 3, v{t0}
    v_and_b32 v{t0}, 0x2c, v{lane}
    v_mov_b32 v{t1}, {OOB:#x}
    v_cmp_eq_u32 vcc, 0, v{t0}
    v_cndmask_b32 v{vRST}, v{t1}, v{vRST}, vcc
    v_and_b32 v{t0}, 3, v{lane}
    v_cmp_eq_u32 vcc, 0, v{t0}
    v_cndmask_b32 v{vTM}, 0, 1, vcc
    v_lshlrev_b32 v{t0}, 3, v{lane}
    v_and_b32 v{t1}, 32, v{lane}
    v_lshlrev_b32 v{t1}, 1, v{t1}
    v_xor_b32 v{vX1W}, v{t0}, v{t1}
    v_lshrrev_b32 v{t0}, 2, v{lane}
    v_lshlrev_b32 v{t0}, 3, v{t0}
    v_and_b32 v{t1}, 2, v{lane}
    v_lshlrev_b32 v{t1}, 5, v{t1}
    v_xor_b32 v{t0}, v{t0}, v{t1}
    v_and_b32 v{t1}, 3, v{lane}
    v_lshl_add_u32 v{vX1R}, v{t1}, 7, v{t0}
    v_mov_b64 v[16:17], 0
    v_mov_b64 v[18:19], 0
    ds_write_b128 v{vL16}, v[16:19] offset:{L_Z}
    v_mov_b32 v{t1}, {LDS_OOB:#x}
    v_and_b32 v{t0}, 13, v{c}
    v_and_b32 v{t2}, 1, v{g}
    v_lshl_add_u32 v{t0}, v{t2}, 1, v{t0}
    v_lshrrev_b32 v{t2}, 1, v{g}
    v_lshl_add_u32 v{t0}, v{t2}, 4, v{t0}
    v_lshlrev_b32 v{vX2W}, 4, v{t0}
    v_and_b32 v{t0}, 2, v{c}
    v_cmp_ne_u32 vcc, 0, v{t0}
    v_cndmask_b32 v{vX2W}, v{t1}, v{vX2W}, vcc
    s_mov_b32 s{sC}, {np_f32_bits(128**-0.5 * 1.4426950408889634):#x}
            ''')
        if ci == 1:
            set_mask(k, sMSK, lambda l: ((l & 15) >> 2) & 1)
            for n in range(4):
                set_mask(k, sMSK + 2 + 2*n, lambda l: (l & 15) < 8 and n == 2*(l & 1) + ((l >> 1) & 1))
            set_mask(k, sVAL, lambda l: l & 2)
            k.I(f'''
            s_cmp_eq_u32 s{sEX}, 0
            s_cselect_b64 s[{sEXM}:{sEXM+1}], -1, 0
    s_mov_b32 s{sSTEP}, 0
    s_mov_b32 s{sSY}, {WS_SY:#x}
    s_lshl_b32 s{sFO}, s{sH}, 2
    s_add_u32 s{sFO}, s{sFO}, s{sSY}
    s_lshl_b32 s{sEX}, s{sH}, 1
    s_add_u32 s{sEX}, s{sEX}, {WS_SY + 128:#x}
    s_and_b32 s{sT}, s{sH}, {cfg.get('syr', 8) - 1}
    s_lshl_b32 s{sT}, s{sT}, 8
    s_add_u32 s{sSY}, s{sSY}, s{sT}
    s_mov_b32 s{sMC}, {WS_M}
    s_lshl_b32 s{sT}, s{sW}, 10
    s_add_u32 s{sML}, s{sT}, {WS_M + 4096}
    s_mov_b32 s{sM8}, {WS_M + 8192}
    s_lshl_b32 s{sKVX}, s{sH}, 14
    s_lshl_b32 s{sT}, s{sW}, 12
    s_add_u32 s{sKVX}, s{sKVX}, s{sT}
    s_add_u32 s{sKVX}, s{sKVX}, {WS_KVX:#x}
    s_lshl_b32 s{sFKVX}, s{sH}, 8
    s_add_u32 s{sFKVX}, s{sFKVX}, {F_KVX:#x}
    s_add_u32 s{sMHU}, s{sU64}, {WS_MH - 0x10000:#x}
    s_add_u32 s{sMHX}, s{sX64}, {WS_MH - 0x10000:#x}
    s_mov_b32 s{sINC}, {0x10000 + M_SLOT}
    s_mov_b32 s{sP0}, 0
    s_mov_b32 s{sP0+1}, 0x10000
    s_mov_b32 s{sP0+2}, 0x20000
    s_mov_b32 s{sP0+3}, 0x30000
    s_lshl_b32 s{sPU}, s{sU64}, 5
    s_lshl_b32 s{sPX}, s{sX64}, 5
    s_mov_b32 s{sKVXN}, {0 if cfg.get("samekv") else 524288}
    s_mul_i32 s{sMRU}, s{sH}, 384
    s_add_u32 s{sMRU}, s{sMRU}, {WS_M + 2*M_SLOT}
            ''')
        if ci == 4:
            for u in range(2):
                for hf in range(2):
                    for sub in range(2):
                        k.I(f'ds_read_b64_tr_b16 {vr(TMP + 8*u + 4*hf + 2*sub, 2)}, v{vTOo} offset:{(64*u + 32*hf + 2*sub)*32}')
            k.I(f'v_add_u32 v16, s{sOB}, v{vL16}')
            k.wait(lg=0)
            for q in range(4): k.I(f'ds_write_b128 v16, {vr(TMP + 4*q, 4)} offset:{q*1024}')
        if ci == len(stages) - 1:
            k.I(f'''
            v_mov_b32 v16, 1
            buffer_load_dword v17, off, {srd(S_DBG)}, 0 offset:{D_INIT} sc1
            buffer_load_dword v18, off, {srd(S_DBG)}, 0 offset:{D_CHAIN} sc1
            ''')
    marks(-1)
    L.run(TMP, hook, extra=lambda ci: 5 if ci < 3 else 0)
    if cfg.get('lmarks'):
        k.wait(lg=0)
        for i in range(8): k.raw(f'  s_sub_u32 s{12+i}, s{80+2*i}, s98')
    stamp(k, cfg, 'loaded')
    tl(k, cfg, 0)
    k.I(f'''
    s_mov_b32 s{S_C}, s{S_WS}
    s_mov_b32 s{S_C+1}, s{S_WS+1}
    s_and_b32 s{S_C+2}, s{sEXM}, {WS_SIZE:#x}
    s_mov_b32 s{S_C+3}, 0x20000
    v_readfirstlane_b32 s{sT}, v17
    v_readfirstlane_b32 s33, v18
    buffer_atomic_add v16, v{vA0}, {srd(S_DBG)}, 0 offen offset:{D_LOADED}
    s_cmp_ge_u32 s{sT}, {N_INIT}
    s_cbranch_scc0 L_c_spin
    s_and_b32 s{sT}, s33, 0xffff
    s_cmp_ge_u32 s{sT}, 32
    s_cbranch_scc1 L_c_bar_ok
    ''')
    k.label('L_c_spin')
    spin_dbg(k, 'L_c_init', D_INIT, f's_cmp_ge_u32 s33, {N_INIT}')
    spin_dbg(k, 'L_c_bar', D_CHAIN, f's_and_b32 s{sT}, s33, 0xffff\ns_cmp_ge_u32 s{sT}, 32')
    k.I(f's_lshr_b32 s{sFOREIGN}, s33, 16')
    k.label('L_c_kv0')
    k.I(f'''
    buffer_load_dwordx2 v[16:17], off, {ws}, s{sFKVX} sc1
    s_sub_u32 s{sBUD}, s{sBUD}, 1
    s_cbranch_scc1 L_exit
    v_cmp_eq_u32 vcc, 0, v16
    s_cbranch_vccnz L_c_kv0
    v_readfirstlane_b32 s{sFLG}, v17
    ''')
    k.reset()
    k.I(f's_add_u32 s{sFKVX}, s{sFKVX}, 4')
    for a in range(16, 32, 2): k.I(f'v_mov_b64 {vr(a,2)}, 0')
    stamp(k, cfg, 8)
    if cfg.get('tl') == 2: k.raw('  s_memtime s[90:91]')
    tl(k, cfg, 1)
    if cfg.get('stamps'):
        k.raw('  s_memrealtime s[100:101]')
        if not cfg.get('lmarks'):
            for i in range(8): k.raw(f'  s_mov_b32 s{12+i}, 0')
    k.I(f's_cmp_lg_u32 s{sFOREIGN}, 0')
    k.I('s_cbranch_scc1 L_c_slow')
    for md in ('f', 's'):
        if md == 's': k.label('L_c_slow')
        for w in range(3):
            k.I(f's_cmp_eq_u32 s{sW}, {w}'); k.I(f's_cbranch_scc1 L_c{md}{w}_entry')
        k.I(f's_branch L_c{md}3_entry')

DEFMARKS = ['A', 'B', 'C', 'D', 'E', 'F', 'hop1', 'hop2']
def stamp(k, cfg, i):
    if not cfg.get('stamps'): return
    if i == 'loaded': k.raw('  s_memtime s[26:27]'); return
    if isinstance(i, str):
        if cfg['stamps'] != 1: return
        m = cfg.get('marks', DEFMARKS)
        if i not in m: return
        i = m.index(i)
    k.raw(f'  s_memtime s[{80+2*i}:{81+2*i}]')

TRACE = ['h2i', 'h2ok', 'bar1', 'std', 'h1i', 'h1d', 'red', 'syd']
def tr(k, cfg, nm):
    if cfg.get('trace'):
        i = TRACE.index(nm); k.raw(f'  s_memtime s[{80+2*i}:{81+2*i}]')
        if nm == 'std': k.raw('  s_memrealtime s[96:97]')

def chain_loop(k, P, st, cfg, w):
    ws = srd(S_WS)
    d1 = cfg['d1'][w]
    EXW = (w == 1)
    NP, SYR = cfg.get('np', 5), cfg.get('syr', 8)
    PA_, PV_, PF_, PR = 72, 73, 74, [75, 76, 77, 78, 79]
    def mload(reg, so, off): return f'buffer_load_dwordx4 {vr(reg,4)}, v{vL16}, {ws}, s{so} offen offset:{off}'
    eloads = [mload(MA[0], sMC, 0), mload(MA[1], sM8, 0), mload(MA[3], sMC, 1024)]
    lload = mload(MA[2], sML, 0) + ' sc1'
    k.reset()
    k.label(P + '_top')
    PROFREGS = list(range(80, 96, 2)) + list(range(12, 20, 2)) + [24, 26]
    if cfg.get('prof') is not None:
        k.prof = dict(zip(cfg['prof'], PROFREGS)); k.ordn = 0; k.prof_text = []
    stamp(k, cfg, 'h2')
    k.I('s_barrier')
    k.label(P + '_h2')
    tr(k, cfg, 'syd')
    mg = cfg.get('mg', 12)
    nhead = cfg.get('nhead', 4)
    eloads += [mload(KX, sMC, 2048), mload(KX + 4, sMC, 3072)]
    for i in range(nhead):
        k.I(eloads[i])
        if i < nhead - 1: k.nop(mg)
    lhead = cfg.get('pll', 3) < 0
    if lhead: k.nop(mg); k.I(lload)
    tr(k, cfg, 'h2i')
    k.wait(vm=nhead - 1 + lhead, lg=0)
    def acc_stamps():
        if cfg.get('nocomm'): k.I('s_barrier')
        if cfg.get('stamps') == 1:
            k.raw('  s_memtime s[24:25]\n  s_waitcnt lgkmcnt(0)\n  s_cmp_lt_u32 s%d, 2\n  s_cbranch_scc1 %s_noacc' % (sSTEP, P))
            for i in range(8):
                k.raw(f'  s_sub_u32 s33, s{82+2*i if i < 7 else 24}, s{80+2*i}\n  s_add_u32 s{12+i}, s{12+i}, s33')
            k.label(P + '_noacc')
        stamp(k, cfg, 'A')
    def B(name, u): return vr(WR[u], 8) if name in LDS_CH else W(name, u)
    T = [0, 8, 1, 2, 3, 4 + w, 4 + (w ^ 1), 4 + (w ^ 2), 4 + (w ^ 3)]
    R = [MA[0], MA[1], MA[3], KX, KX + 4, MA[2], MA[0], MA[3], MA[2]]
    kfirst = (1, 3)
    seq = []
    for i in range(7):
        for m in ('KQ' if i in kfirst else 'QK'):
            for u in range(2): seq.append((m, u, i))
    seq += [('Q', 0, 7), ('Q', 1, 7), ('Q', 0, 8), ('Q', 1, 8), ('K', 0, 7), ('K', 0, 8), ('K', 1, 7), ('K', 1, 8)]
    mf = [SM(ACC[m.lower() + str(u)], R[i], B(f'{m}{T[i]}', u)) for m, u, i in seq]
    lpos = [(p, f'{m}{T[i]}') for p, (m, u, i) in enumerate(seq) if u == 0 and f'{m}{T[i]}' in LDS_CH]
    QFIRST = lpos[0][1]
    fill = {}
    def add(pos, *ins): fill.setdefault(pos, []).extend(ins)
    def mread(i, reg): return f'ds_read_b128 {vr(reg,4)}, v{vL16} offset:{L_MA + T[i]*1024}'
    def wreads(nm, ps, buf=WR):
        r = lds_frag_reads(nm, 0, buf[0], w) + lds_frag_reads(nm, 1, buf[1], w)
        for p, x in zip(ps, r): add(p, x)
    pll, pl, pb2 = cfg.get('pll', 3), cfg.get('pl', 16), cfg.get('pb2', 22)
    if isinstance(pl, (list, tuple)): pl = pl[w]
    acc_stamps(); tr(k, cfg, 'h2ok')
    tq, tl_ = vNEG1, vLAND
    for i in range(nhead, 5): add(cfg.get('es', 3)*(i - nhead), eloads[i])
    if pll >= 0: add(pll, lload)
    own = (0, 2, 3, 4)[w]
    ow = cfg.get('ow', 2)
    add(4*own + (ow[w] if isinstance(ow, (list, tuple)) else ow), f'ds_write_b128 v{vL16}, {vr(R[own],4)} offset:{L_MA + w*1024}')
    add(0, f'v_max_u32 v{tq}, v{R[0]}, v{R[0]+2}')
    for i in range(1, 5): add(4*i, f'v_max3_u32 v{tq}, v{tq}, v{R[i]}, v{R[i]+2}')
    add(17, f'v_cmp_eq_u32 s[{sT2}:{sT2+1}], -1, v{tq}')
    if not cfg.get('nocomm'): add(19, f's_cmp_lg_u64 s[{sT2}:{sT2+1}], 0', f's_cbranch_scc1 {P}_h2q')
    def bar():
        n = [i for i, d in enumerate(k.lg) if d is not k.FAKE and not d]
        if n: k.wait(lg=len(k.lg) - 1 - n[-1], explicit=False)
        k.I('s_barrier')
    add(pl, f'ds_write_b128 v{vL16}, {vr(MA[2],4)} offset:{L_MA + T[5]*1024}', f'v_max_u32 v{tl_}, v{MA[2]}, v{MA[2]+2}')
    add(pl + 1, f'v_cmp_eq_u32 vcc, -1, v{tl_}')
    if not cfg.get('nocomm'): add(pl + 2, f's_cbranch_vccnz {P}_lr', P + '_lrd:')
    add(pb2, bar, mread(6, R[6])); add(pb2 + 1, mread(7, R[7])); add(max(pb2 + 2, 24), mread(8, R[8]))
    add(35, lambda: tr(k, cfg, 'bar1'))
    for (p, _), (pn, nm) in zip(lpos, lpos[1:]):
        wreads(nm, [p, p + 1, p + 1, p + 2] if pn - p < 8 else [p, p + 1, p + 2, p + 3])
    def zread(reg): return f'ds_read_b128 {vr(reg,4)}, v{vL16} offset:{L_Z}'
    add(31, zread(64)); add(32, zread(68))
    add(32, 'v_add_f32 v16, v16, v18'); add(33, 'v_add_f32 v17, v17, v19'); add(34, f'v_cvt_pk_bf16_f32 v57, v16, v17')
    assert pl + 2 <= 19 and pb2 >= 19
    kvp = cfg.get('kvp', (16, 20, 7, 11))
    for i in range(4):
        add(kvp[i] + w, f'buffer_load_dwordx4 {vr((KX, KX+4, VX, VX+4)[i],4)}, v{vL16}, {ws}, s{sKVX} offen offset:{1024*i} sc1')
    ex = srd(S_C)
    if w == 3: add(9, f's_cmp_eq_u32 s{sFLG}, 0', f's_cbranch_scc1 {P}_kvwait', P + '_kvok:')
    s0 = cfg.get('slow0', 25)
    add(s0 - 1, f's_add_u32 s{sKVX}, s{sKVX}, s{sKVXN}')
    add(21, f'v_lshlrev_b32 v{vLAND}, 3, v{vL16}')
    late = {}
    nc = lambda x: (lambda: k.I(x, nocheck=True))
    if not cfg.get('nowarm'):
        add(s0 + 2*((w + 1) & 3), 's_mov_b32 exec_hi, 0', f'buffer_load_dword v{vLAND}, v{vLAND}, {ws}, s{sKVX} offen sc1', 's_mov_b32 exec_hi, -1')
    if w == 3: add(s0 + 1, nc(f'buffer_load_dword v{vLAND}, off, {ws}, s{sFKVX} offset:4 sc1'))
    if w == 0: add(s0 + 3, nc(f'buffer_load_dword v{vLAND}, v{vX1R}, {ws}, s{sMRU} offen sc1'))
    if not cfg.get('noexp'):
        late[17 - w] = [f'buffer_store_dwordx2 {vr(RD,2)}, v{vRST}, {ws}, s{sMHU} offen sc1']
        if EXW: add(s0 + 1, f'buffer_store_dwordx2 {vr(RD+2,2)}, v{vRST}, {ex}, s{sMHX} offen sc1')
    for i in range(cfg.get('shift', 0)): add((33, 33, 5, 5)[i], 's_nop 0')
    add(34, f's_mov_b64 vcc, s[{sVAL}:{sVAL+1}]')
    salE = [f's_add_u32 s{sMHU}, s{sMHU}, s{sINC}', f's_add_u32 s{sMC}, s{sMC}, {M_SLOT}']
    if w == 0: salE += [f's_add_u32 s{sMRU}, s{sMRU}, {M_SLOT}']
    if EXW: salE += [f's_add_u32 s{sMHX}, s{sMHX}, s{sINC}', f's_add_u32 s{sMX}, s{sX64}, s{sMC}']
    salE += [f's_add_u32 s{sMU}, s{sU64}, s{sMC}', f's_add_u32 s{sML}, s{sML}, {M_SLOT}', f's_add_u32 s{sM8}, s{sM8}, {M_SLOT}', f's_mov_b32 s{sINC}, {M_SLOT}']
    sal2 = []
    if w == 3: sal2 += [f's_add_u32 s{sFKVX}, s{sFKVX}, 4', f'v_readfirstlane_b32 s{sFLG}, v{vLAND}']
    interleave(k, mf, fill, cfg.get('dropA', ()))
    stamp(k, cfg, 'B')
    vs = []
    for i, a in ((1, MA[1]), (6, MA[0]), (7, MA[3]), (8, MA[2]), (0, MA[1]), (2, MA[0]), (3, MA[3]), (4, MA[2]), (5, MA[1])):
        for u in range(2): vs.append(SM(ACC[f'v{u}'], a, W(f'V{T[i]}', u)))
    def V(n=1):
        for _ in range(n):
            k.I(vs.pop(0))
            for x in late.get(len(vs), []): k.I(x, nocheck=True)
    PK, QK, ONE = 56, 60, 28
    Sw = L_S + 1024*w
    k.I(f'''
    v_add_f32 v24, v24, v26
    v_add_f32 v25, v25, v27
    v_cvt_pk_bf16_f32 v{PK}, v24, v25
    ds_write_b64 v{vX1W}, {vr(PK,2)} offset:{Sw}
    v_pk_add_f32 v[20:21], v[20:21], v[22:23]
    v_pk_add_f32 v[28:29], v[28:29], v[30:31]
    v_cvt_pk_bf16_f32 v{PK+3}, v20, v21
    v_cvt_pk_bf16_f32 v{PK+2}, v28, v29
    ds_write_b64 v{vX1W}, {vr(PK+2,2)} offset:{Sw+512}
    ds_read_b64_tr_b16 {vr(QK,2)}, v{vX1R} offset:{Sw}
    ds_read_b64_tr_b16 {vr(QK+2,2)}, v{vX1R} offset:{Sw+512}
    ''')
    stamp(k, cfg, 'B1')
    V()
    V(); k.I(mread(0, MA[1])); k.I(f'v_mov_b32 v{ONE}, 0x3f803f80')
    V(); k.I(f'v_mov_b32 v{ONE+1}, 0x3f803f80')
    V(); k.I(mread(2, MA[0]))
    V()
    stamp(k, cfg, 'B2')
    k.I(f'v_mfma_f32_16x16x32_bf16 v[16:19], {vr(KX,4)}, {vr(QK,4)}, 0')
    k.I(f'v_mov_b32 v{ONE+2}, 0x3f803f80')
    k.I(f'v_mfma_f32_16x16x32_bf16 v[20:23], {vr(KX+4,4)}, {vr(QK,4)}, 0')
    k.I(f'v_mov_b32 v{ONE+3}, 0x3f803f80')
    k.I(f'v_mfma_f32_16x16x32_bf16 v[24:27], {vr(QK,4)}, {vr(QK,4)}, 0')
    k.I(f'v_lshrrev_b32 v59, 2, v{vL16}')
    V(); k.I(mread(3, MA[3]))
    stamp(k, cfg, 'B3')
    qp = 'quad_perm:[2,3,0,1] row_mask:0xf bank_mask:0xf'
    for r in range(4):
        k.I(f'v_cndmask_b32_dpp v{16+r}, v{20+r}, v{16+r}, vcc {qp}')
    k.I(f'ds_write_b128 v{vL16}, v[16:19] offset:{Sw}')
    k.I(f'v_cndmask_b32_dpp v24, v25, v24, vcc {qp}')
    k.I(f'ds_write_b32 v59, v24 offset:{L_R5 + 256*w}')
    stamp(k, cfg, 'B4')
    V()
    V(); k.I(mread(4, MA[2]))
    V()
    V(); k.I(mread(5, MA[1]))
    V()
    stamp(k, cfg, 'B5')
    k.wait(lg=2)
    k.I('s_barrier')
    stamp(k, cfg, 'B6')
    k.I(f'ds_read_b128 v[20:23], v{vL16} offset:{L_S + 1024*(w^1)}')
    k.I(f'ds_read_b128 v[72:75], v{vL16} offset:{L_S + 1024*(w^2)}')
    V()
    k.I(f'ds_read_b128 v[76:79], v{vL16} offset:{L_S + 1024*(w^3)}')
    V()
    k.I(f'ds_read2st64_b32 v[26:27], v59 offset0:{L_R5//256 + (w^1)} offset1:{L_R5//256 + (w^2)}')
    V()
    k.I(f'ds_read_b32 v25, v59 offset:{L_R5 + 256*(w^3)}')
    V(); k.I(lds_frag_reads('Oo', 0, 40, w)[0])
    V(); k.I(lds_frag_reads('O00', 0, 56, w)[1])
    V(); k.I(lds_frag_reads('O00', 0, 56, w)[0])
    V()
    assert not vs
    stamp(k, cfg, 'B7')
    for r in range(4): k.I(f'v_add_f32 v{16+r}, v{16+r}, v{20+r}')
    for r in range(2): k.I(f'v_pk_add_f32 {vr(72+2*r,2)}, {vr(72+2*r,2)}, {vr(76+2*r,2)}')
    k.I('v_pk_add_f32 v[24:25], v[24:25], v[26:27]')
    for r in range(2): k.I(f'v_pk_add_f32 {vr(16+2*r,2)}, {vr(16+2*r,2)}, {vr(72+2*r,2)}')
    k.I('v_add_f32 v24, v24, v25')
    stamp(k, cfg, 'C')
    m, t = 72, 73
    WB = [40, 48]
    oo = lds_frag_reads('Oo', 0, WB[0], w) + lds_frag_reads('Oo', 1, WB[1], w)
    o0 = lds_frag_reads('O00', 0, 56, w) + lds_frag_reads('O00', 1, 64, w)
    k.I(f'''
    v_max3_f32 v{m}, v16, v17, v18
    v_max3_f32 v{m}, v{m}, v19, v24
    v_pk_add_f32 v[64:65], v[64:65], v[66:67]
    v_pk_add_f32 v[68:69], v[68:69], v[70:71]
    v_max_f32_dpp v{m}, v{m}, v{m} {qp}
    v_mov_b32 v{t}, v{m}
    v_cvt_pk_bf16_f32 v70, v64, v65
    v_cvt_pk_bf16_f32 v71, v68, v69
    v_permlane16_swap_b32 v{t}, v{m}
    v_max_f32 v{m}, v{m}, v{t}
    v_mov_b32 v{t}, v{m}
    v_mov_b32 v27, 0
    v_mov_b32 v68, 0
    v_permlane32_swap_b32 v{t}, v{m}
    v_max_f32 v{m}, v{m}, v{t}
    v_mul_f32 v{m}, s{sC}, v{m}
    v_fma_f32 v16, v16, s{sC}, -v{m}
    v_fma_f32 v17, v17, s{sC}, -v{m}
    v_fma_f32 v18, v18, s{sC}, -v{m}
    v_fma_f32 v19, v19, s{sC}, -v{m}
    v_fma_f32 v24, v24, s{sC}, -v{m}
    v_exp_f32 v16, v16
    v_exp_f32 v17, v17
    v_exp_f32 v18, v18
    v_exp_f32 v19, v19
    v_cvt_pk_bf16_f32 v20, v16, v17
    v_cvt_pk_bf16_f32 v21, v18, v19
    v_exp_f32 v24, v24
    v_mov_b32_dpp v22, v20 {qp}
    v_mov_b32_dpp v23, v21 {qp}
    v_mov_b32_dpp v25, v24 {qp}
    v_cvt_pk_bf16_f32 v26, v24, v25
    ''')
    stamp(k, cfg, 'D')
    k.I(f'''
    v_mfma_f32_16x16x32_bf16 v[16:19], {vr(ONE,4)}, v[20:23], 0
    {oo[2]}
    v_mov_b32 v69, v26
    v_mfma_f32_16x16x32_bf16 v[72:75], {vr(VX,4)}, v[20:23], 0
    {oo[3]}
    v_mfma_f32_16x16x16_bf16 v[16:19], {vr(ONE,2)}, v[26:27], v[16:19]
    {oo[1]}
    v_mfma_f32_16x16x32_bf16 v[76:79], {vr(VX+4,4)}, v[20:23], 0
    {o0[2]}
    v_mfma_f32_16x16x16_bf16 v[72:75], v[70:71], v[26:27], v[72:75]
    v_rcp_f32 v24, v16
    v_mfma_f32_16x16x16_bf16 v[76:79], v[70:71], v[68:69], v[76:79]
    {o0[3]}
    {f's_mov_b64 exec, s[{sVAL}:{sVAL+1}]' if cfg.get('x2exec', 1) else 's_nop 0'}
    v_pk_mul_f32 v[72:73], v[72:73], v[24:25] op_sel_hi:[1,0]
    v_pk_mul_f32 v[74:75], v[74:75], v[24:25] op_sel_hi:[1,0]
    v_cvt_pk_bf16_f32 v36, v72, v73
    v_cvt_pk_bf16_f32 v37, v74, v75
    v_pk_mul_f32 v[76:77], v[76:77], v[24:25] op_sel_hi:[1,0]
    v_pk_mul_f32 v[78:79], v[78:79], v[24:25] op_sel_hi:[1,0]
    v_cvt_pk_bf16_f32 v38, v76, v77
    v_cvt_pk_bf16_f32 v39, v78, v79
    ds_write_b128 v{vX2W}, v[36:39] offset:{L_X2 + 512*w}
    {'s_mov_b64 exec, -1' if cfg.get('x2exec', 1) else ''}
    ''')
    OACC = [16, 20, 24, 28, 32, 56, 60, 64, 68]
    stamp(k, cfg, 'E')
    ev = cfg.get('ev', 0)
    zs = [f'v_mov_b64 {vr(a,2)}, 0' for a in range(16, 36, 2)]
    if ev == 0: pre_b, post_b = zs + salE[:5], salE[5:]
    elif ev == 1: pre_b, post_b = salE, zs
    elif ev == 2: pre_b, post_b = [], zs
    elif ev == 3: pre_b, post_b = zs, []
    if ev >= 2: sal1 = salE
    else: sal1 = []
    for s in pre_b: k.I(s)
    k.wait(lg=0)
    k.I('s_barrier')
    OA = [72, 76]
    for kp in range(2): k.I(f'ds_read_b128 {vr(OA[kp],4)}, v{vL16} offset:{L_X2 + 1024*kp}')
    for s in post_b: k.I(s)
    stamp(k, cfg, 'F')
    mf = [SM(OACC[0], OA[0], vr(WB[0], 8)), SM(OACC[0], OA[1], vr(WB[1], 8))]
    for i in range(4):
        for kp in range(2):
            nm = f'O{i}{kp}'
            for u in range(2):
                mf.append(SM(OACC[1 + 2*i + u], OA[kp], vr(56 + 8*u, 8) if nm == 'O00' else vr(WB[u], 8) if nm in LDS_CH else W(nm, u)))
    fill = {}
    wreads('O11', [0, 1, 2, 3], WB); wreads('O31', [8, 9, 10, 11], WB)
    add(4, zread(56)); add(5, zread(60)); add(6, zread(64)); add(8, zread(68))
    def fin(a): return [f'v_add_f32 v{a}, v{a}, v{a+2}', f'v_add_f32 v{a+1}, v{a+1}, v{a+3}']
    def cv(d, a): return f'v_cvt_pk_bf16_f32 v{d}, v{a}, v{a+1}'
    def pk(a): return f'v_pk_add_f32 {vr(a,2)}, {vr(a,2)}, {vr(a+2,2)}'
    def pst(i, d): return f'buffer_store_dwordx2 {vr(d,2)}, v{vPST}, {ws}, s{sP0+i} offen {st}'
    O = OACC
    def tag(d): return f'v_bfi_b32 v{d}, v{vTM}, s{sSTEP}, v{d}'
    ready = [3, 6, 7, 10, 11, 14, 15, 18, 19]
    vps = cfg.get('vps', [1]*18)
    jobs = [(ready[0], x) for x in fin(O[0]) + [cv(36, O[0]), tag(36), f'buffer_store_dword v36, v{vPSO}, {ws}, s{sP0} offen {st}']]
    for i in range(4):
        d = 38 if i % 2 == 0 else 36
        a, b = O[1 + 2*i], O[2 + 2*i]
        jobs += [(ready[1+2*i], x) for x in fin(a) + [cv(d, a), tag(d)]] + [(ready[2+2*i], x) for x in fin(b) + [cv(d+1, b), pst(i, d)]]
    for p in range(18):
        n = vps[p]
        while jobs and jobs[0][0] <= p:
            x = jobs[0][1]
            if x.startswith('v_'):
                if n == 0: break
                n -= 1; add(p, x)
            else:
                if n < vps[p]:
                    if p == 17: break
                    add(p + 1, x)
                else: add(p, x)
            jobs.pop(0)
    post = []
    rest = [x for _, x in jobs]
    while rest:
        if len(rest) > 1 and rest[0].startswith('v_add_f32') and rest[1].startswith('v_add_f32') and int(rest[0].split()[1][1:-1]) % 4 == 0:
            post.append(pk(int(rest[0].split()[1][1:-1]))); rest = rest[2:]
        else: post.append(rest.pop(0))
    def red_loads(r, so, rs):
        return [f'buffer_load_dwordx4 {vr(r,4)}, v{vL16}, {rs}, s{so} offen sc1', f'buffer_load_dwordx4 {vr(r+4,4)}, v{vL16}, {rs}, s{so} offen offset:1024 sc1']
    RG = 16 if w == 0 else 24
    if w < 2:
        el = red_loads(16, sPU, ws) if w == 0 else red_loads(16, sPX, ex)
        ep = cfg['ep'][w]
        if ep < 18: add(ep, el[0]); add(min(ep + 1, 17), el[1])
        else:
            idx = ([i for i, x in enumerate(post) if x.startswith('buffer_store')] + [len(post)])[ep - 18]
            post[idx:idx] = el
    for p, nm in ((0, 'F1'), (5, 'F2'), (9, 'F3'), (13, 'F4'), (17, 'F5')):
        fill.setdefault(p, []).insert(0, lambda nm=nm: stamp(k, cfg, nm))
    interleave(k, mf, fill, cfg.get('dropF', ()))
    for s in post:
        if not any(d in s for d in cfg.get('dropF', ())): k.I(s)
    stamp(k, cfg, 'hop1')
    tr(k, cfg, 'std')
    AS, D = 44, 40
    nst = [len(k.vm) - 1 - i for i, d in enumerate(k.vm) if ('v', 20) in d]
    def poll(j): k.I(f'buffer_load_dword v{PR[j]}, v{PA_}, {ws}, s{sSY} offen sc1', nocheck=True)
    def red(rd, so, retry, rs, r):
        k.I(f'v_bitop3_b32 v{rd}, v{r}, v{r+4}, s{sSTEP} bitop3:0x7e', nocheck=True)
        k.I(f'v_and_b32 v{rd}, v{vTM}, v{rd}')
        k.I(f'v_cmp_ne_u32 vcc, 0, v{rd}')
        k.I(f'v_mfma_f32_16x16x32_bf16 {vr(D,4)}, {vr(AS,4)}, {vr(r,4)}, 0', nocheck=True)
        k.I(f'v_mfma_f32_16x16x32_bf16 {vr(D,4)}, {vr(AS,4)}, {vr(r+4,4)}, {vr(D,4)}', nocheck=True)
        if not cfg.get('nocomm'):
            if rd == RD: k.I('s_cbranch_vccnz ' + retry)
            else: k.I(f's_and_b64 vcc, vcc, s[{sEXM}:{sEXM+1}]'); k.I('s_cbranch_scc1 ' + retry)
        if w == 0 or rd != RD:
            k.I(f'buffer_store_dword v{PV_}, v{PF_}, {rs}, s{sFO if w == 0 else sEX} offen {st}')
        for ro in (8, 4):
            for j in range(4):
                k.I(f'v_add_f32_dpp v{D+j}, v{D+j}, v{D+j} row_ror:{ro} row_mask:0xf bank_mask:0xf')
        k.I(f'''
        v_cvt_pk_bf16_f32 v{rd}, v{D}, v{D+1}
        v_cvt_pk_bf16_f32 v{rd+1}, v{D+2}, v{D+3}
        buffer_store_dwordx2 {vr(rd,2)}, v{vRST}, {rs}, s{so} offen {st}
        ''', nocheck=True)
    pre = [f'v_mov_b32 v{D}, 0x3f80', f'v_cndmask_b32 v{D}, v{D}, 1.0, s[{sMSK}:{sMSK+1}]']
    pre += [f'v_cndmask_b32 v{AS+n}, 0, v{D}, s[{sMSK+2+2*n}:{sMSK+3+2*n}]' for n in (2, 3, 0, 1)]
    if w == 0:
        pre += [f'v_cmp_gt_u32 vcc, {16*SYR}, v{vL16}', f'v_lshlrev_b32 v{PF_}, 4, v{vL16}', f'v_mov_b32 v{PV_}, s{sSTEP}',
                f'v_cndmask_b32 v{PF_}, {OOB:#x}, v{PF_}, vcc', f'v_lshrrev_b32 v{PA_}, 2, v{vL16}']
    if EXW:
        pre += [f'v_cmp_gt_u32 vcc, {32*SYR}, v{vL16}', f'v_and_b32 v{PA_}, 16, v{vL16}', f'v_lshlrev_b32 v{PF_}, 3, v{vL16}', f'v_lshlrev_b32 v{PA_}, 2, v{PA_}',
                f'v_sub_u32 v{PF_}, v{PF_}, v{PA_}', f'v_mov_b32 v{PV_}, s{sSTEP}', f'v_cndmask_b32 v{PF_}, {OOB:#x}, v{PF_}, vcc']
    qre = lds_frag_reads(QFIRST, 0, WR[0], w) + lds_frag_reads(QFIRST, 1, WR[1], w)
    pre += qre
    zero = lambda r: [f'v_mov_b64 {vr(a,2)}, 0' for a in range(r, r + 8, 2)]
    if not EXW: pre += zero(40 - RG)
    pre += sal1
    pi = cfg.get('pi', 44)
    tstd = k.time
    if w > 0:
        while pre and k.time + 4 < tstd + d1/1.1: k.I(pre.pop(0))
        k.nop(max(int(tstd + d1/1.05) - k.time, 0) // 4)
        for x in red_loads(RG, sPU, ws): k.I(x, nocheck=True)
    tr(k, cfg, 'h1i')
    stamp(k, cfg, 'h1i')
    for x in pre: k.I(x)
    if EXW:
        k.raw(f'  s_waitcnt vmcnt({nst[0] + 2})')
        k.label(P + '_h1x')
        red(RD + 2, sMX, P + '_rx', ex, 16)
        for x in zero(16): k.I(x, nocheck=True)
    k.raw(f'  s_waitcnt vmcnt({nst[0] if w == 0 else 2 if EXW else 0})')
    k.label(P + '_h1m')
    k.vm = []
    tr(k, cfg, 'h1d')
    stamp(k, cfg, 'h1d')
    red(RD, sMU, P + '_ru', ws, RG)
    tr(k, cfg, 'red')
    stamp(k, cfg, 'hop2')
    work = [f's_add_u32 s{sSTEP}, s{sSTEP}, 1', f's_cmp_eq_u32 s{sSTEP}, {NSTEP}', f's_cbranch_scc1 {P}_done'] + zero(RG) + sal2
    t1 = k.time
    if w == 0:
        for j in range(NP):
            poll(j); t0 = k.time
            if j < NP - 1:
                while work and k.time < t0 + pi - 8: k.I(work.pop(0))
                k.nop(max(t0 + pi - 4 - k.time, 0) // 4)
    for x in work: k.I(x)
    if w == 0:
        k.raw(f'  s_waitcnt vmcnt({NP - 1})')
        k.I(f'v_cmp_gt_i32 vcc, v{PV_}, v{PR[0]}', nocheck=True)
        if not cfg.get('nocomm'): k.I(f's_cbranch_vccnz {P}_fl')
        k.label(P + '_fld')
        k.nop(cfg.get('hold', 0) // 4)
    k.I(f's_branch {P}_top')
    if k.prof is not None: cfg.setdefault('prof_text', {})[P] = k.prof_text
    k.prof = None
    k.reset()
    k.label(P + '_h2q')
    if cfg.get('stamps') == 2: k.raw(f'  s_add_u32 s17, s17, 1')
    k.label(P + '_h2r')
    if cfg.get('stamps') == 2: k.raw(f'  s_add_u32 s12, s12, 1')
    for x in eloads: k.I(x + ' sc1')
    k.wait(vm=0)
    k.label(P + '_entry')
    for x in qre: k.I(x)
    k.I(f's_sub_u32 s{sBUD}, s{sBUD}, 1')
    k.I('s_cbranch_scc1 L_exit')
    for a in range(16, 32, 2): k.I(f'v_mov_b64 {vr(a,2)}, 0')
    k.I(f's_branch {P}_h2')
    k.reset()
    k.label(P + '_lr')
    if cfg.get('stamps') == 2: k.raw(f'  s_add_u32 s15, s15, 1')
    k.I(lload)
    k.I(f'''
    s_sub_u32 s{sBUD}, s{sBUD}, 1
    s_cbranch_scc1 L_exit
    v_max_u32 v{tl_}, v{MA[2]}, v{MA[2]+2}
    v_cmp_eq_u32 vcc, -1, v{tl_}
    s_cbranch_vccnz {P}_lr
    ds_write_b128 v{vL16}, {vr(MA[2],4)} offset:{L_MA + T[5]*1024}
    s_waitcnt lgkmcnt(0)
    s_branch {P}_lrd
    ''')
    if w == 0:
        k.reset()
        k.label(P + '_fl')
        for j in range(NP):
            if cfg.get('stamps') == 2: k.raw('  s_add_u32 s16, s16, 1')
            poll(j)
            k.raw(f'  s_waitcnt vmcnt({NP-1})')
            k.I(f'v_cmp_gt_i32 vcc, v{PV_}, v{PR[(j+1) % NP]}', nocheck=True)
            k.I(f's_cbranch_vccz {P}_fld')
        k.I(f's_sub_u32 s{sBUD}, s{sBUD}, 1')
        k.I('s_cbranch_scc1 L_exit')
        k.I(f's_branch {P}_fl')
    rets = [('_ru', RG, sPU, sMU, '_h1m', '_h1d', RD)]
    if EXW: rets.append(('_rx', 16, sPX, sMX, '_h1x', '_h1xd', RD + 2))
    for nm, r, so, sm, back, done, rd in rets:
        k.reset()
        k.label(P + nm)
        if cfg.get('stamps') == 2: k.raw(f'  s_add_u32 s{13 if nm == "_ru" else 14}, s{13 if nm == "_ru" else 14}, 1')
        for x in red_loads(r, so, ws): k.I(x)
        k.I(f's_sub_u32 s{sBUD}, s{sBUD}, 1')
        k.I('s_cbranch_scc1 L_exit')
        k.wait(vm=0)
        k.I(f's_branch {P}{back}')
    if w == 3:
        k.reset()
        k.label(P + '_kvwait')
        k.I(f'''
        buffer_load_dword v{vLAND}, off, {ws}, s{sFKVX} sc1
        s_sub_u32 s{sBUD}, s{sBUD}, 1
        s_cbranch_scc1 L_exit
        s_waitcnt vmcnt(0)
        v_cmp_eq_u32 vcc, 0, v{vLAND}
        s_cbranch_vccnz {P}_kvwait
        s_branch {P}_kvok
        ''')
    k.reset()
    k.label(P + '_done')
    k.I(f'buffer_store_dwordx2 {vr(RD,2)}, v{vRST}, {ws}, s{sMHU} offen sc1')
    if EXW:
        k.I(f'buffer_store_dwordx2 {vr(RD+2,2)}, v{vRST}, {srd(S_C)}, s{sMHX} offen sc1')
    if cfg.get('trace'): PROFREGS = list(range(80, 98, 2))
    if cfg.get('prof') is not None or cfg.get('trace'):
        k.raw('  s_waitcnt lgkmcnt(0)')
        for i, r in enumerate(PROFREGS): k.I(f'v_mov_b32 v{20+i}, s{r}')
        k.I(f's_add_u32 s{sT}, s{sU64}, {WS_STAMP:#x}')
        for i in range(4): k.I(f'buffer_store_dwordx4 {vr(20+4*i,4)}, off, {ws}, s{sT} offset:{16*i}')
    if cfg.get('stamps'):
        k.raw('  s_memtime s[24:25]\n  s_memrealtime s[74:75]\n  s_waitcnt lgkmcnt(0)')
        for i in range(10): k.I(f'v_mov_b32 v{20+i}, s{12+i if i < 8 else 80+2*i}')
        k.I(f'v_mov_b32 v30, s24\nv_mov_b32 v31, s{sBUD}\nv_mov_b32 v32, s100\nv_mov_b32 v33, s74\nv_mov_b32 v34, s26\nv_mov_b32 v35, 0')
        k.I(f's_add_u32 s{sT}, s{sU64}, {WS_STAMP:#x}')
        for i in range(4): k.I(f'buffer_store_dwordx4 {vr(20+4*i,4)}, off, {ws}, s{sT} offset:{16*i}')
    k.I('s_branch L_exit')
```

```python
from asmlib import *
from layout import *

S_WS, S_DBG, S_A, S_B, S_C, S_D = 4, 8, 12, 16, 20, 24
sPOOL, sSLOT, sW, sBUD, sFOREIGN = 28, 29, 30, 31, 32
BUDGET = 1 << 21

def srd(n): return f's[{n}:{n+3}]'

def load_srds(k, pairs):
    for s, name in pairs:
        k.I(f's_load_dwordx2 s[{s}:{s+1}], s[0:1], {KA[name]}')
    k.wait(lg=0)
    for s, name in pairs:
        k.I(f's_mov_b32 s{s+2}, {SZ[name]:#x}')
        k.I(f's_mov_b32 s{s+3}, 0x20000')

def frag_reg(dest, off, n):
    kind, base = dest
    return vr(base + off, n, kind)

def load_chunks(k, chunks, sLW, sT, vLin, vtmp, nslot=9, after_first=None, marks=None, after_issue=None):
    n = len(chunks)
    def dma(c):
        ch = chunks[c]; slot = c % nslot
        for i in range(4):
            k.I(f's_add_u32 m0, s{sLW}, {slot*4096 + i*1024}')
            k.I(ch['soff'](i))
            k.I(f"buffer_load_dwordx4 {ch['vdma']}, {srd(ch['srd'])}, s{sT} offen lds")
    issued = min(nslot, n)
    if marks: marks(-2)
    for c in range(issued): dma(c)
    if marks: marks(-1)
    if after_issue: after_issue()
    for c in range(n):
        ch = chunks[c]; slot = c % nslot
        k.wait(vm=4 * (issued - 1 - c))
        if marks: marks(c)
        if c == 0 and after_first: after_first()
        dest = ch['dest'] or [('v', vtmp), ('v', vtmp + 8)]
        for u in range(2):
            for hf in range(2):
                for sub in range(2):
                    k.I(f"ds_read_b64_tr_b16 {frag_reg(dest[u], 4*hf + 2*sub, 2)}, {ch['vtr']} offset:{slot*4096 + ch['imm'](u, hf, sub)}")
        k.wait(lg=0)
        if ch['dest'] is None:
            for q in range(4):
                k.I(f'ds_write_b128 v{vLin}, {vr(vtmp + 4*q, 4)} offset:{slot*4096 + q*1024}')
        if issued < n:
            assert ch['dest'] is not None
            dma(issued); issued += 1
    k.wait(vm=0, lg=0)

def spin_dbg(k, name, off, cond_lines, vt=(16, 17)):
    a, d = vt
    k.I(f'v_mov_b32 v{a}, {off}')
    k.label(name)
    k.I(f'buffer_load_dword v{d}, v{a}, {srd(S_DBG)}, 0 offen sc1')
    k.I(f's_sub_u32 s{sBUD}, s{sBUD}, 1')
    k.I('s_cbranch_scc1 L_exit')
    k.wait(vm=0)
    k.I(f'v_readfirstlane_b32 s33, v{d}')
    k.I(cond_lines)
    k.I(f's_cbranch_scc1 {name}_ok')
    k.I('s_sleep 2')
    k.I(f's_branch {name}')
    k.label(name + '_ok')
    k.reset()

def mask64(f):
    m = 0
    for l in range(64):
        if f(l): m |= 1 << l
    return m
def set_mask(k, s, f):
    m = mask64(f)
    k.I(f's_mov_b32 s{s}, {m & 0xffffffff:#x}'); k.I(f's_mov_b32 s{s+1}, {m >> 32:#x}')

def interleave(k, mf, fill, drop=()):
    for i, m in enumerate(mf):
        k.I(m)
        fl = [f for f in fill.get(i, []) if not (isinstance(f, str) and any(d in f for d in drop))]
        isv = lambda f: isinstance(f, str) and f.startswith('v_')
        for f in [f for f in fl if not isv(f)] + [f for f in fl if isv(f)]: k.I(f) if isinstance(f, str) else f()

S_KA = 64
def make_srds(k, pairs):
    for s, name in pairs:
        p = S_KA + KA[name] // 4
        k.I(f's_mov_b32 s{s}, s{p}\ns_mov_b32 s{s+1}, s{p+1}\ns_mov_b32 s{s+2}, {SZ[name]:#x}\ns_mov_b32 s{s+3}, 0x20000')

def tl(k, cfg, i):
    if cfg.get('tl'): k.raw(f'  s_memrealtime s[{98+2*i}:{99+2*i}]\n  s_waitcnt lgkmcnt(0)')

class PairLoader:
    def __init__(self, k, lane, c, g, t, regs, sPB, sLW, sT, base, pair_stride, nslot):
        self.k, self.lane, self.c, self.g, self.t = k, lane, c, g, t
        self.vD0, self.vD1, self.vDP, self.vT0, self.vT1, self.vTP, self.vWB, self.vRow = regs
        self.sPB, self.sLW, self.sT, self.nslot = sPB, sLW, sT, nslot
        k.I(f'''
        s_lshr_b32 s{sT}, s{sW}, 1
        s_mul_i32 s{sPB}, s{sT}, {pair_stride}
        s_add_u32 s{sPB}, s{sPB}, {base}
        s_and_b32 s33, s{sW}, 1
        s_lshl_b32 s{sLW}, s33, 12
        s_add_u32 s{sLW}, s{sLW}, s{sPB}
        s_lshl_b32 s33, s33, 5
        v_lshrrev_b32 v{self.vRow}, 3, v{lane}
        v_add_u32 v{self.vRow}, s33, v{self.vRow}
        ''')
    def src(self, kind, stride, sbase):
        k, (t0, t1) = self.k, self.t[:2]
        d = self.vD0 if kind == 'nat' else self.vDP
        k.I(f'''
        v_bfe_u32 v{t0}, v{self.lane}, {4 if kind == 'nat' else 5}, 1
        v_lshlrev_b32 v{t0}, {1 if kind == 'nat' else 2}, v{t0}
        v_and_b32 v{t1}, 7, v{self.lane}
        v_xor_b32 v{t0}, v{t0}, v{t1}
        v_mul_u32_u24 v{d}, {stride}, v{self.vRow}
        v_lshl_add_u32 v{d}, v{t0}, 4, v{d}
        s_lshr_b32 s33, s{sW}, 1
        s_lshl_b32 s33, s33, 7
        s_add_u32 s33, s33, s{sbase}
        v_add_u32 v{d}, s33, v{d}
        ''')
        if kind == 'nat': k.I(f'v_xor_b32 v{self.vD1}, 64, v{self.vD0}')
    def rd_nat(self):
        k, (t0, t1, t2), c, g = self.k, self.t, self.c, self.g
        k.I(f'''
        v_lshrrev_b32 v{t0}, 2, v{c}
        v_lshl_add_u32 v{t1}, v{g}, 3, v{t0}
        v_lshlrev_b32 v{t1}, 7, v{t1}
        v_and_b32 v{t2}, 3, v{c}
        v_lshl_add_u32 v{t1}, v{t2}, 3, v{t1}
        v_lshrrev_b32 v{t0}, 1, v{t0}
        v_and_b32 v{t2}, 1, v{g}
        v_lshl_add_u32 v{t0}, v{t2}, 1, v{t0}
        s_and_b32 s33, s{sW}, 1
        s_lshl_b32 s33, s33, 1
        v_xor_b32 v{t0}, s33, v{t0}
        v_lshl_add_u32 v{t1}, v{t0}, 5, v{t1}
        v_add_u32 v{self.vT0}, s{self.sPB}, v{t1}
        v_xor_b32 v{self.vT1}, 32, v{self.vT0}
        v_lshlrev_b32 v{self.vWB}, 4, v{self.lane}
        v_add_u32 v{self.vWB}, s{self.sLW}, v{self.vWB}
        ''')
    def rd_perm(self, vrow, cgshift):
        k, (t0, t1) = self.k, self.t[:2]
        k.I(f'''
        v_bfe_u32 v{t0}, v{vrow}, 2, 1
        s_and_b32 s33, s{sW}, 1
        v_xor_b32 v{t0}, s33, v{t0}
        v_lshlrev_b32 v{t0}, 6, v{t0}
        v_lshl_add_u32 v{t0}, v{vrow}, 7, v{t0}
        v_and_b32 v{t1}, 3, v{self.c}
        v_lshl_add_u32 v{t0}, v{t1}, {cgshift}, v{t0}
        v_add_u32 v{self.vTP}, s{self.sPB}, v{t0}
        ''')
    def dma(self, ci):
        k, st = self.k, self.stages[ci]
        for i in range(4):
            k.I(f's_add_u32 m0, s{self.sLW}, {(ci % self.nslot)*8192 + i*1024}')
            k.I(f"s_mov_b32 s{self.sT}, {st['off'] + 8*i*st['stride']:#x}")
            v = self.vDP if st['kind'] != 'nat' else (self.vD0, self.vD1)[i & 1]
            k.I(f"buffer_load_dwordx4 v{v}, {srd(st['srd'])}, s{self.sT} offen lds")
        self.issued += 1
    def start(self, stages, n):
        self.stages = stages; self.issued = 0
        for ci in range(n): self.dma(ci)
    def run(self, tmp=None, hook=None, extra=lambda ci: 0):
        k, n, ns = self.k, len(self.stages), self.nslot
        while self.issued < min(ns, n): self.dma(self.issued)
        def writeback(ci):
            for q in range(4): k.I(f'ds_write_b128 v{self.vWB}, {vr(tmp + 4*q, 4)} offset:{(ci % ns)*8192 + q*1024}')
        for ci in range(n):
            st = self.stages[ci]
            k.wait(vm=4*(self.issued - 1 - ci) + extra(ci), lg=0)
            k.I('s_barrier')
            if ci >= 1 and self.stages[ci - 1]['dest'] is None: writeback(ci - 1)
            dest = st['dest'] or [('v', tmp), ('v', tmp + 8)]
            for u in range(2):
                for hf in range(2):
                    for sub in range(2):
                        if st['kind'] == 'nat': vt, imm = (self.vT0, self.vT1)[u], (32*hf + 4*sub)*128
                        else: vt, imm = self.vTP, (32*hf + 2*sub)*128 + st['ustep']*u
                        k.I(f"ds_read_b64_tr_b16 {frag_reg(dest[u], 4*hf + 2*sub, 2)}, v{vt} offset:{(ci % ns)*8192 + imm}")
            if ci >= 1 and self.issued < n: self.dma(self.issued)
            if hook: hook(ci)
        k.wait(lg=0)
        k.I('s_barrier')
        if self.stages[n - 1]['dest'] is None: writeback(n - 1)
```

```python
from common import *
import numpy as np
def f32b(x): return int(np.float32(x).view(np.uint32))
LOG2E = 1.4426950408889634
ws = srd(S_WS)

def wdest27(i):
    if i < 16: return [('a', 16*i), ('a', 16*i + 8)]
    return [('v', 80 + 16*(i-16)), ('v', 88 + 16*(i-16))]
def fr(d, off=0, n=8): return vr(d[1] + off, n, d[0])

def lane_consts(k, lane, c, g):
    k.I(f'v_mov_b32 v{lane}, v0\nv_and_b32 v{c}, 15, v{lane}\nv_lshrrev_b32 v{g}, 4, v{lane}')
def sparse_idx(k, vI, lane, t0, t1):
    k.I(f'''
    v_mov_b32 v{vI}, 0x4444
    v_mov_b32 v{t0}, 0xeeee
    v_and_b32 v{t1}, 2, v{lane}
    v_cmp_ne_u32 vcc, 0, v{t1}
    v_cndmask_b32 v{vI}, v{vI}, v{t0}, vcc
    ''')
def signal(k, rs, so, off, vone, vl0):
    k.wait(vm=0)
    k.I('s_barrier')
    k.I(f'v_mov_b32 v{vone}, 1')
    k.I(f'buffer_atomic_add v{vone}, v{vl0}, {rs}, {so} offen offset:{off}')
def lane0_off(k, v, lane):
    k.I(f's_lshl_b32 s33, s{sW}, 6\nv_or_b32 v{v}, s33, v{lane}\nv_min_u32 v{v}, 1, v{v}\nv_lshlrev_b32 v{v}, 30, v{v}')
def xlane_g(k, op, v, t, fill=()):
    for sw in ('v_permlane16_swap_b32', 'v_permlane32_swap_b32'):
        k.I(f'v_mov_b32 v{t}, v{v}'); k.I(f'{sw} v{t}, v{v}'); k.I(f'{op} v{v}, v{v}, v{t}')
def rnd_bf16(k, pairs, t):
    for a, b in pairs:
        k.I(f'v_cvt_pk_bf16_f32 v{t}, v{a}, v{b}\nv_lshlrev_b32 v{a}, 16, v{t}\nv_and_b32 v{b}, 0xffff0000, v{t}')

def role_init(k, cfg):
    k.label('L_init'); k.reset()
    k.I(f'''
    s_sub_u32 s34, s{sPOOL}, 5
    s_lshl_b32 s34, s34, 1
    s_add_u32 s34, s34, s{sSLOT}
    s_sub_u32 s34, s34, 30
    s_lshl_b32 s34, s34, 2
    s_add_u32 s34, s34, s{sW}
    v_lshlrev_b32 v1, 4, v0
    v_mov_b64 v[4:5], -1
    v_mov_b64 v[6:7], -1
    v_mov_b64 v[8:9], 0
    v_mov_b64 v[10:11], 0
    s_lshl_b32 s35, s34, 10
    s_add_u32 s35, s35, {WS_F}
    s_cmp_lt_u32 s34, 16
    s_cbranch_scc0 L_init2
    buffer_store_dwordx4 v[8:11], v1, {ws}, s35 offen sc1
    ''')
    k.label('L_init2')
    make_srds(k, [(S_A, 'mem0')])
    k.I(f'''
    s_lshl_b32 s38, s34, 10
    s_add_u32 s38, s38, {WS_M}
    s_sub_u32 s37, s34, 9
    s_lshl_b32 s39, s37, 10
    s_add_u32 s39, s39, {WS_MH}
    s_cmp_lt_u32 s34, 9
    s_cselect_b32 s36, s34, s37
    s_cselect_b32 s38, s38, s39
    s_lshl_b32 s36, s36, 7
    v_bfe_u32 v12, v0, 2, 2
    v_and_b32 v13, 1, v0
    v_lshl_add_u32 v12, v12, 1, v13
    v_mul_u32_u24 v12, 1152, v12
    v_lshrrev_b32 v13, 4, v0
    v_lshl_add_u32 v12, v13, 5, v12
    v_and_b32 v13, 2, v0
    v_lshl_add_u32 v12, v13, 1, v12
    ''')
    for q in range(4): k.I(f'buffer_load_dword v{16+q}, v12, {srd(S_A)}, s36 offen offset:{8*q}')
    def fill(base, n):
        k.I(f's_mul_i32 s35, s34, {n*1024}\ns_add_u32 s35, s35, {base}')
        for i in range(n):
            k.I(f'buffer_store_dwordx4 v[4:7], v1, {ws}, s35 offen offset:{(i%4)*1024} sc1')
            if i % 4 == 3 and i < n - 1: k.I('s_add_u32 s35, s35, 4096')
    fill(0, 12)
    fill(WS_SY, 1)
    fill(WS_M + M_SLOT, 24)
    fill(WS_MH + M_SLOT, 24)
    for q in range(4): k.I(f'v_min_u32 v{16+q}, -2, v{16+q}')
    k.I('s_cmp_lt_u32 s34, 18\ns_cbranch_scc0 L_init3')
    k.I(f'buffer_store_dwordx4 v[16:19], v1, {ws}, s38 offen sc1')
    k.label('L_init3')
    lane0_off(k, 2, 0)
    signal(k, srd(S_DBG), 0, D_INIT, 3, 2)
    k.I('s_branch L_exit')

def role_pa(k, cfg):
    k.label('L_pa'); k.reset()
    sH, sJ, sLW, sT, sSEG, sXS, sXB, sST, sIT, sKV, sFL, sMH, sO, sOC, sC = range(34, 49)
    vL16, vIDX, vXD, vSTW, vQR, vVR, vIMW, vL8, vDLT, vL0, vXR = range(11)
    XB, STB, IMG = 0, 73728, 122880
    lane, c, g, t0, t1, t2 = 79, 78, 77, 76, 75, 74
    make_srds(k, [(S_A, 'Wq'), (S_B, 'Wk'), (S_C, 'Wv'), (S_D, 'x')])
    lane_consts(k, lane, c, g)
    k.I(f'''
    s_sub_u32 s{sT}, s{sPOOL}, 1
    s_lshl_b32 s{sT}, s{sT}, 5
    s_add_u32 s{sT}, s{sT}, s{sSLOT}
    s_lshr_b32 s{sH}, s{sT}, 2
    s_and_b32 s{sJ}, s{sT}, 3
    v_lshlrev_b32 v{vL16}, 4, v{lane}
    v_lshlrev_b32 v{vL8}, 3, v{lane}
    v_add_u32 v{vL8}, {IMG}, v{vL8}
    v_mul_u32_u24 v{vXD}, 1152, v{c}
    v_lshl_add_u32 v{vXD}, v{g}, 4, v{vXD}
    s_lshr_b32 s{sT}, s{sW}, 1
    s_mul_i32 s{sT}, s{sT}, {16*1152}
    s_and_b32 s33, s{sW}, 1
    s_mul_i32 s33, s33, 576
    s_add_u32 s{sT}, s{sT}, s33
    v_add_u32 v{vXD}, s{sT}, v{vXD}
    v_lshlrev_b32 v{t0}, 5, v{c}
    v_lshl_add_u32 v{t0}, v{g}, 3, v{t0}
    s_lshl_b32 s{sT}, s{sW}, 10
    s_add_u32 s{sT}, s{sT}, {IMG}
    v_add_u32 v{vIMW}, s{sT}, v{t0}
    s_and_b32 s{sT}, s{sW}, 1
    s_lshl_b32 s{sT}, s{sT}, 4
    v_lshlrev_b32 v{t0}, 2, v{g}
    v_sub_u32 v{vDLT}, v{c}, v{t0}
    v_add_u32 v{vDLT}, s{sT}, v{vDLT}
    s_mov_b32 s{sC}, {f32b(128**-0.5 * LOG2E):#x}
    s_mov_b32 s{sXS}, s{sJ}
    s_mov_b32 s{sXB}, 0
    ''')
    if cfg.get('pref', 1):
        k.I(f'''
        s_mul_i32 s{sT}, s{sJ}, 144
        s_mul_i32 s33, s{sW}, 36
        s_add_u32 s{sT}, s{sT}, s33
        s_lshl_b32 s{sT}, s{sT}, 13
        s_lshl_b32 s33, s{sH}, 8
        s_add_u32 s{sT}, s{sT}, s33
        s_add_u32 s33, s{sT}, {4*8192}
        v_lshrrev_b32 v{t0}, 1, v{lane}
        v_and_b32 v{t1}, 1, v{lane}
        v_lshlrev_b32 v{t1}, 7, v{t1}
        v_lshl_add_u32 v{t0}, v{t0}, 13, v{t1}
        ''')
        for i, sr in enumerate((S_B, S_C, S_A)):
            k.I(f'buffer_load_dword v{60+2*i}, v{t0}, {srd(sr)}, s{sT} offen')
            k.I(f'buffer_load_dword v{61+2*i}, v{t0}, {srd(sr)}, s33 offen')
    sparse_idx(k, vIDX, lane, t0, t1)
    lane0_off(k, vL0, lane)
    def xdma():
        k.I(f's_mul_i32 s{sT}, s{sXS}, {32*1152}')
        k.I(f's_mul_i32 s33, s{sW}, 9216\ns_add_u32 s33, s33, s{sXB}')
        for i in range(9):
            k.I(f's_add_u32 m0, s33, {i*1024}')
            k.I(f'buffer_load_dwordx4 v{vXD}, {srd(S_D)}, s{sT} offen lds')
            if i < 8: k.I(f's_add_u32 s{sT}, s{sT}, 64')
        k.I(f's_add_u32 s{sXS}, s{sXS}, 4\ns_min_u32 s{sXS}, s{sXS}, 63\ns_xor_b32 s{sXB}, s{sXB}, 36864')
    xdma()
    L = PairLoader(k, lane, c, g, (t0, t1, t2), range(40, 48), sKV, sLW, sT, 49152, 57344, 7)
    k.I(f's_lshl_b32 s{sFL}, s{sH}, 8')
    L.src('nat', 8192, sFL)
    L.rd_nat()
    WD = {}
    stages = []
    for n in range(9):
        for m, sr in (('Q', S_A), ('K', S_B), ('V', S_C)):
            d = wdest27(len(stages)); WD[m, n] = d
            stages.append(dict(kind='nat', srd=sr, off=n*64*8192, stride=8192, dest=d))
    if cfg.get('pref', 1) and cfg.get('prefwait', 1): k.wait(vm=0)
    L.start(stages, 0); L.run()
    tl(k, cfg, 0)
    spin_dbg(k, 'L_pa_init', D_INIT, f's_cmp_ge_u32 s33, {N_INIT}')
    k.I(f'''
    s_lshl_b32 s{sKV}, s{sH}, 14
    s_lshl_b32 s{sT}, s{sJ}, 19
    s_add_u32 s{sKV}, s{sKV}, s{sT}
    s_lshl_b32 s{sT}, s{sW}, 12
    s_add_u32 s{sKV}, s{sKV}, s{sT}
    s_add_u32 s{sKV}, s{sKV}, {WS_KVX:#x}
    s_lshl_b32 s{sFL}, s{sH}, 8
    s_lshl_b32 s{sT}, s{sJ}, 2
    s_add_u32 s{sFL}, s{sFL}, s{sT}
    s_add_u32 s{sFL}, s{sFL}, {F_KVX:#x}
    s_mul_i32 s{sMH}, s{sJ}, {M_SLOT}
    s_add_u32 s{sMH}, s{sMH}, {WS_MH:#x}
    s_lshl_b32 s{sO}, s{sJ}, 18
    s_and_b32 s{sT}, s{sW}, 1
    s_lshl_b32 s{sT}, s{sT}, 17
    s_add_u32 s{sO}, s{sO}, s{sT}
    s_lshl_b32 s{sT}, s{sH}, 12
    s_add_u32 s{sO}, s{sO}, s{sT}
    s_lshr_b32 s{sT}, s{sW}, 1
    s_lshl_b32 s{sT}, s{sT}, 11
    s_add_u32 s{sO}, s{sO}, s{sT}
    s_add_u32 s{sO}, s{sO}, {WS_O:#x}
    s_lshl_b32 s{sOC}, s{sJ}, 7
    s_add_u32 s{sOC}, s{sOC}, {F_OCNT:#x}
    s_lshl_b32 s{sT}, s{sW}, 10
    s_add_u32 s{sT}, s{sT}, {STB}
    v_add_u32 v{vSTW}, s{sT}, v{vL16}
    s_and_b32 s{sT}, s{sW}, 1
    s_lshl_b32 s{sT}, s{sT}, 12
    s_add_u32 s{sT}, s{sT}, {STB}
    v_add_u32 v{vQR}, s{sT}, v{vL16}
    s_lshr_b32 s{sT}, s{sW}, 1
    s_lshl_b32 s{sT}, s{sT}, 11
    s_add_u32 s{sT}, s{sT}, {STB + 16384}
    v_add_u32 v{vVR}, s{sT}, v{vL16}
    v_mov_b32 v{vXR}, v{vL16}
    s_mov_b32 s{sST}, 0
    s_mov_b32 s{sIT}, 0
    s_barrier
    ''')
    k.label('L_pa_proj'); k.reset()
    xdma()
    A = {}
    i = 0
    for m in 'QKV':
        for u in range(2):
            for tt in range(2): A[m, u, tt] = 16 + 4*i; i += 1
    XF = lambda ks, tt: 64 + 8*(ks & 1) + 4*tt
    def xread(ks):
        for tt in range(2): k.I(f'ds_read_b128 {vr(XF(ks,tt),4)}, v{vXR} offset:{(tt*18 + ks)*1024}')
    xread(0)
    for ks in range(18):
        first = True
        for m in 'QKV':
            for u in range(2):
                wf = fr(WD[m, ks >> 1][u], 4*(ks & 1), 4)
                for tt in range(2):
                    a = vr(A[m, u, tt], 4); x = vr(XF(ks, tt), 4)
                    ops = (wf, x) if m != 'V' else (x, wf)
                    k.I(f'v_mfma_f32_16x16x32_bf16 {a}, {ops[0]}, {ops[1]}, {a if ks else 0}')
                    if first and tt == 1 and ks < 17: xread(ks + 1); first = False
    quads = [('Q', 0), ('Q', 1), ('K', 0), ('K', 1), ('V', 0), ('V', 1)]
    for qi, (m, x) in enumerate(quads):
        d = 64 + 4*(qi % 4)
        src = [A[m, 0, x], A[m, 1, x]] if m != 'V' else [A[m, x, 0], A[m, x, 1]]
        for h in range(2):
            k.I(f'v_cvt_pk_bf16_f32 v{d+2*h}, v{src[h]}, v{src[h]+1}\nv_cvt_pk_bf16_f32 v{d+2*h+1}, v{src[h]+2}, v{src[h]+3}')
        k.I(f'ds_write_b128 v{vSTW}, {vr(d,4)} offset:{qi*4096}')
        if qi >= 2: k.I(f'buffer_store_dwordx4 {vr(d,4)}, v{vL16}, {ws}, s{sKV} offen offset:{(qi-2)*1024} sc1')
    k.wait(vm=0, lg=0)
    k.I(f'''
    s_barrier
    buffer_store_dword v{vIDX}, v{vL0}, {ws}, s{sFL} offen sc1
    s_add_u32 s{sKV}, s{sKV}, {4 << 19}
    s_add_u32 s{sFL}, s{sFL}, 16
    v_xor_b32 v{vXR}, 36864, v{vXR}
    s_bitcmp1_b32 s{sIT}, 0
    s_cselect_b32 s{sT}, -1, 1
    s_mul_i32 s{sT}, s{sT}, 24576
    v_add_u32 v{vSTW}, s{sT}, v{vSTW}
    s_add_u32 s{sIT}, s{sIT}, 1
    s_cmp_eq_u32 s{sIT}, 1
    s_cbranch_scc1 L_pa_proj
    ''')
    k.label('L_pa_att'); k.reset()
    Q, KF, S0, MAf, KA = 16, 32, 64, 16, 52
    vKR = 11
    k.I(f'v_add_u32 v{vKR}, s{sST}, v{vL16}\nv_add_u32 v{vKR}, {STB + 8192}, v{vKR}')
    for ks in range(4): k.I(f'ds_read_b128 {vr(Q+4*ks,4)}, v{vQR} offset:{ks*1024}')
    for t in range(2):
        for ks in range(4): k.I(f'ds_read_b128 {vr(KF+16*t+4*ks,4)}, v{vKR} offset:{t*4096 + ks*1024}')
    for ks in range(4):
        for t in range(2):
            a = vr(S0+4*t, 4)
            k.I(f'v_mfma_f32_16x16x32_bf16 {a}, {vr(KF+16*t+4*ks,4)}, {vr(Q+4*ks,4)}, {a if ks else 0}')
    k.I(f'v_mov_b32 v76, {f32b(-1e9 / 128**-0.5):#x}')
    for t in range(2):
        for r in range(4):
            k.I(f'v_cmp_gt_i32 vcc, {16*t + r}, v{vDLT}\nv_cndmask_b32 v{S0+4*t+r}, v{S0+4*t+r}, v76, vcc')
    AC = dict(k0=52, k1=56, v0=60, v1=72)
    for a in AC.values(): k.I(f'v_mov_b64 {vr(a,2)}, 0\nv_mov_b64 {vr(a+2,2)}, 0')
    k.I(f's_add_u32 s{sT}, s{sMH}, 4096\ns_add_u32 s33, s{sMH}, 8192')
    if cfg.get('psleep'):
        k.I(f's_cmp_ge_u32 s{sIT}, 17\ns_cbranch_scc1 L_pa_poll')
        k.label('L_pa_doze')
        k.I(f'''
        s_sleep {cfg['psleep']}
        buffer_load_dword v76, v{vL16}, {ws}, s{sMH} offen sc1
        s_sub_u32 s{sBUD}, s{sBUD}, 1
        s_cbranch_scc1 L_exit
        v_cmp_eq_u32 vcc, -1, v76
        s_cbranch_vccnz L_pa_doze
        ''')
    k.label('L_pa_poll')
    for n in range(9):
        so = (sMH, sT, 33)[n // 4]
        k.I(f'buffer_load_dwordx4 {vr(MAf+4*n,4)}, v{vL16}, {ws}, s{so} offen offset:{(n%4)*1024} sc1')
    k.I(f's_sub_u32 s{sBUD}, s{sBUD}, 1\ns_cbranch_scc1 L_exit')
    k.I(f'v_max_u32 v76, v{MAf}, v{MAf+2}')
    for n in range(1, 9): k.I(f'v_max3_u32 v76, v76, v{MAf+4*n}, v{MAf+4*n+2}')
    k.I('v_cmp_eq_u32 vcc, -1, v76\ns_cbranch_vccnz L_pa_poll')
    tl(k, cfg, 1)
    for n in range(9):
        for m in 'KV':
            for u in range(2):
                k.I(f'v_smfmac_f32_16x16x64_bf16 {vr(AC[m.lower()+str(u)],4)}, {vr(MAf+4*n,4)}, {fr(WD[m,n][u])}, v{vIDX}')
    VF = 32
    for ks in range(4): k.I(f'ds_read_b128 {vr(Q+4*ks,4)}, v{vQR} offset:{ks*1024}')
    for u in range(2):
        ka, va = AC[f'k{u}'], AC[f'v{u}']
        k.I(f'''
        v_pk_add_f32 {vr(ka,2)}, {vr(ka,2)}, {vr(ka+2,2)}
        v_pk_add_f32 {vr(va,2)}, {vr(va,2)}, {vr(va+2,2)}
        v_cvt_pk_bf16_f32 v{76+2*u}, v{ka}, v{ka+1}
        v_cvt_pk_bf16_f32 v{77+2*u}, v{va}, v{va+1}
        ds_write_b64 v{vIMW}, {vr(76+2*u,2)} offset:{512*u}
        ''')
    for et in range(4): k.I(f'ds_read_b128 {vr(VF+4*et,4)}, v{vVR} offset:{(et&1)*4096 + (et>>1)*1024}')
    k.I(f's_and_b32 s{sT}, s{sW}, 1\ns_lshl_b32 s{sT}, s{sT}, 10\nv_subrev_u32 v{vKR}, s{sT}, v{vIMW}')
    k.wait(lg=4)
    k.I('s_barrier')
    KM, VM = 48, 12
    for ks in range(4):
        for u in range(2): k.I(f'ds_read_b64_tr_b16 {vr(KM+4*ks+2*u,2)}, v{vL8} offset:{ks*1024 + u*512}')
    for et in range(4): k.I(f'ds_read_b32 v{VM+et}, v{vKR} offset:{et*512 + 4}')
    SMm = 72
    for ks in range(4):
        k.I(f'v_mfma_f32_16x16x32_bf16 {vr(SMm,4)}, {vr(KM+4*ks,4)}, {vr(Q+4*ks,4)}, {vr(SMm,4) if ks else 0}')
    m, t = 76, 77
    k.I(f'''
    v_max3_f32 v{m}, v64, v65, v66
    v_max3_f32 v{m}, v{m}, v67, v68
    v_max3_f32 v{m}, v{m}, v69, v70
    v_max_f32 v{m}, v{m}, v71
    v_max3_f32 v{m}, v{m}, v72, v73
    ''')
    xlane_g(k, 'v_max_f32', m, t)
    k.I(f'v_mul_f32 v{m}, s{sC}, v{m}')
    for r in range(64, 74): k.I(f'v_fma_f32 v{r}, v{r}, s{sC}, -v{m}')
    for r in range(64, 74): k.I(f'v_exp_f32 v{r}, v{r}')
    k.I(f'v_add_f32 v{m}, v64, v65')
    for r in range(66, 74): k.I(f'v_add_f32 v{m}, v{m}, v{r}')
    xlane_g(k, 'v_add_f32', m, t)
    k.I(f'v_rcp_f32 v{m}, v{m}')
    for r in range(64, 74): k.I(f'v_mul_f32 v{r}, v{r}, v{m}')
    PB = 16
    for r in range(4): k.I(f'v_cvt_pk_bf16_f32 v{PB+r}, v{64+2*r}, v{65+2*r}')
    k.I(f'v_cvt_pk_bf16_f32 v20, v72, v73\nv_mov_b32 v21, 0\nv_mov_b32 v22, 0\nv_mov_b32 v23, v20')
    O = 48
    for et in range(4): k.I(f'v_mfma_f32_16x16x32_bf16 {vr(O+4*et,4)}, {vr(VF+4*et,4)}, {vr(PB,4)}, 0')
    for et in range(4):
        k.I(f'v_mfma_f32_16x16x16_bf16 {vr(O+4*et,4)}, {vr(VM+(et&2),2)}, {vr(20+2*(et&1),2)}, {vr(O+4*et,4)}')
    for mm in range(2):
        for r in range(4): k.I(f'v_cvt_pk_bf16_f32 v{24+4*mm+r}, v{O+8*mm+2*r}, v{O+8*mm+2*r+1}')
        k.I(f'buffer_store_dwordx4 {vr(24+4*mm,4)}, v{vL16}, {ws}, s{sO} offen offset:{mm*1024} sc1')
    signal(k, ws, f's{sOC}', 0, 76, vL0)
    k.I(f'''
    s_add_u32 s{sMH}, s{sMH}, {4*M_SLOT}
    s_add_u32 s{sO}, s{sO}, {4 << 18}
    s_add_u32 s{sOC}, s{sOC}, 512
    s_cmp_eq_u32 s{sST}, 0
    s_cselect_b32 s{sT}, 1, -1
    s_mul_i32 s{sT}, s{sT}, 24576
    s_add_u32 s{sST}, s{sST}, s{sT}
    v_add_u32 v{vQR}, s{sT}, v{vQR}
    v_add_u32 v{vVR}, s{sT}, v{vVR}
    s_cmp_lt_u32 s{sIT}, 16
    s_cbranch_scc1 L_pa_proj
    s_add_u32 s{sIT}, s{sIT}, 1
    s_cmp_eq_u32 s{sIT}, 17
    s_cbranch_scc1 L_pa_att
    s_branch L_exit
    ''')

def role_o(k, cfg):
    k.label('L_o'); k.reset()
    sCS, sLW, sT, sID, sO, sOC, sROW, sPAR = range(34, 42)
    sSEL = 44
    vL16, vEO, vTOK, vRW = 1, 2, 3, 4
    lane, c, g, t0, t1, t2 = 15, 14, 13, 12, 11, 10
    make_srds(k, [(S_A, 'Wo'), (S_B, 'x'), (S_C, 'out')])
    lane_consts(k, lane, c, g)
    vD, vTR = 5, 6
    k.I(f'''
    s_lshl_b32 s{sCS}, s{sSLOT}, 6
    s_sub_u32 s{sID}, s{sPOOL}, 5
    v_lshlrev_b32 v{vL16}, 4, v{lane}
    s_mul_i32 s{sLW}, s{sW}, 36864
    s_add_u32 s{sLW}, s{sLW}, 16384
    v_lshrrev_b32 v{t0}, 2, v{lane}
    v_mul_u32_u24 v{vD}, 1152, v{t0}
    v_and_b32 v{t1}, 3, v{lane}
    v_lshl_add_u32 v{vD}, v{t1}, 4, v{vD}
    s_mul_i32 s{sT}, s{sW}, {1024*1152}
    s_add_u32 s{sT}, s{sT}, s{sCS}
    v_add_u32 v{vD}, s{sT}, v{vD}
    v_lshrrev_b32 v{t0}, 2, v{c}
    v_lshl_add_u32 v{t0}, v{g}, 2, v{t0}
    v_lshlrev_b32 v{t0}, 6, v{t0}
    v_and_b32 v{t1}, 3, v{c}
    v_lshl_add_u32 v{vTR}, v{t1}, 4, v{t0}
    v_add_u32 v{vTR}, s{sLW}, v{vTR}
    v_mul_u32_u24 v{vEO}, 1152, v{c}
    v_lshl_add_u32 v{vEO}, v{g}, 4, v{vEO}
    v_add_u32 v{vEO}, s{sCS}, v{vEO}
    s_lshl_b32 s{sT}, s{sW}, 11
    v_add_u32 v{vRW}, s{sT}, v{vL16}
    s_mov_b32 s{sPAR}, 0
    ''')
    chunks = [dict(srd=S_A, vdma=f'v{vD}', soff=lambda i, n=n: f's_mov_b32 s{sT}, {(64*n + 16*i)*1152}', vtr=f'v{vTR}',
                   imm=lambda u, hf, sub: (32*hf + 16*sub)*64 + 8*u, dest=[('a', 16*n), ('a', 16*n + 8)]) for n in range(16)]
    if cfg.get('o_wait', 1): spin_dbg(k, 'L_o_ld', D_LOADED, 's_cmp_ge_u32 s33, 32')
    load_chunks(k, chunks, sLW, sT, vL16, 56)
    spin_dbg(k, 'L_o_init', D_INIT, f's_cmp_ge_u32 s33, {N_INIT}')
    spin_dbg(k, 'L_o_mod', D_MOD2, 's_cmp_ge_u32 s33, 36')
    tl(k, cfg, 0)
    k.I(f'v_lshlrev_b32 v16, 2, v{lane}\ns_mov_b32 s{sT}, {WS_SEL:#x}')
    k.I(f'buffer_load_dword v17, v16, {ws}, s{sT} offen sc1')
    for i in range(8): k.I(f'v_readlane_b32 s{sSEL+i}, v17, {i}')
    k.label('L_o_task'); k.reset()
    X, U, G = 16, 20, 24
    k.I(f'''
    s_lshl_b32 s{sO}, s{sID}, 17
    s_lshl_b32 s{sT}, s{sW}, 15
    s_add_u32 s{sO}, s{sO}, s{sT}
    s_add_u32 s{sO}, s{sO}, {WS_O:#x}
    s_lshr_b32 s{sOC}, s{sID}, 1
    s_lshl_b32 s{sOC}, s{sOC}, 7
    s_add_u32 s{sOC}, s{sOC}, {F_OCNT:#x}
    s_mul_i32 s{sROW}, s{sID}, {16*1152}
    s_lshl_b32 s{sT}, s{sID}, 4
    v_add_u32 v{vTOK}, s{sT}, v{c}
    buffer_load_dwordx4 {vr(X,4)}, v{vEO}, {srd(S_B)}, s{sROW} offen
    v_lshlrev_b32 v{t0}, 2, v{vTOK}
    s_mov_b32 s{sT}, {WS_G:#x}
    buffer_load_dword v{G}, v{t0}, {ws}, s{sT} offen sc1
    v_mov_b32 v{t0}, {OOB:#x}
    v_lshlrev_b32 v{t1}, 4, v{g}
    v_add_u32 v{t1}, s{sCS}, v{t1}
    ''')
    for i in range(8):
        k.I(f'v_cmp_eq_u32 vcc, s{sSEL+i}, v{vTOK}\nv_cndmask_b32 v{t0}, v{t0}, v{t1}, vcc\nv_add_u32 v{t1}, 1152, v{t1}')
    k.I(f's_mov_b32 s{sT}, {WS_UPD:#x}\nbuffer_load_dwordx4 {vr(U,4)}, v{t0}, {ws}, s{sT} offen sc1')
    k.label('L_o_poll')
    if cfg.get('osleep'):
        k.I(f's_cmp_ge_u32 s{sID}, 120\ns_cbranch_scc1 L_o_ns\ns_sleep {cfg["osleep"]}'); k.label('L_o_ns')
    k.I(f'''
    buffer_load_dword v{t2}, off, {ws}, s{sOC} sc1
    s_sub_u32 s{sBUD}, s{sBUD}, 1
    s_cbranch_scc1 L_exit
    s_waitcnt vmcnt(0)
    v_cmp_gt_u32 vcc, 32, v{t2}
    s_cbranch_vccnz L_o_poll
    ''')
    tl(k, cfg, 1)
    OF = 64
    for n in range(32):
        k.I(f'buffer_load_dwordx4 {vr(OF+4*n,4)}, v{vL16}, {ws}, s{sO} offen offset:{(n%4)*1024} sc1')
        if n % 4 == 3 and n < 31: k.I(f's_add_u32 s{sO}, s{sO}, 4096')
    AC = [32, 36]
    for n in range(32):
        for u in range(2):
            a = vr(AC[u], 4)
            k.I(f'v_mfma_f32_16x16x32_bf16 {a}, {vr(16*(n>>1) + 8*u + 4*(n&1), 4, "a")}, {vr(OF+4*n,4)}, {a if n else 0}')
    k.I(f'v_add_u32 v{t0}, s{sPAR}, v{vRW}')
    for u in range(2): k.I(f'ds_write_b128 v{t0}, {vr(AC[u],4)} offset:{u*1024}')
    k.wait(lg=0)
    k.I(f'''
    s_barrier
    s_cmp_lg_u32 s{sW}, 0
    s_cbranch_scc1 L_o_next
    ''')
    for w in range(1, 4):
        for u in range(2): k.I(f'ds_read_b128 {vr(40+8*(w-1)+4*u,4)}, v{t0} offset:{w*2048 + u*1024}')
    for j in range(4):
        k.I(f'''
        v_lshlrev_b32 v{64+2*j}, 16, v{X+j}
        v_and_b32 v{65+2*j}, 0xffff0000, v{X+j}
        v_lshlrev_b32 v{72}, 16, v{U+j}
        v_and_b32 v{73}, 0xffff0000, v{U+j}
        v_add_f32 v{64+2*j}, v{64+2*j}, v72
        v_add_f32 v{65+2*j}, v{65+2*j}, v73
        ''')
    k.I(f'v_sub_f32 v{G+1}, 1.0, v{G}')
    rnd_bf16(k, [(64+2*j, 65+2*j) for j in range(4)] + [(G, G+1)], 72)
    for j in range(8): k.I(f'v_mul_f32 v{64+j}, v{64+j}, v{G+1}')
    rnd_bf16(k, [(64+2*j, 65+2*j) for j in range(4)], 72)
    for w in range(3):
        for j in range(0, 8, 2): k.I(f'v_pk_add_f32 {vr(32+j,2)}, {vr(32+j,2)}, {vr(40+8*w+j,2)}')
    rnd_bf16(k, [(32+2*j, 33+2*j) for j in range(4)], 72)
    for j in range(8): k.I(f'v_mul_f32 v{32+j}, v{32+j}, v{G}')
    rnd_bf16(k, [(32+2*j, 33+2*j) for j in range(4)], 72)
    for j in range(0, 8, 2): k.I(f'v_pk_add_f32 {vr(32+j,2)}, {vr(32+j,2)}, {vr(64+j,2)}')
    for j in range(4): k.I(f'v_cvt_pk_bf16_f32 v{28+j}, v{32+2*j}, v{33+2*j}')
    k.I(f'buffer_store_dwordx4 v[28:31], v{vEO}, {srd(S_C)}, s{sROW} offen {cfg.get("ost", "")}')
    k.label('L_o_next')
    k.I(f'''
    s_xor_b32 s{sPAR}, s{sPAR}, 8192
    s_add_u32 s{sID}, s{sID}, 3
    s_cmp_lt_u32 s{sID}, 128
    s_cbranch_scc1 L_o_task
    s_branch L_exit
    ''')

def sigmoid(k, d, z):
    k.I(f'v_mul_f32 v{d}, {f32b(-LOG2E):#x}, v{z}\nv_exp_f32 v{d}, v{d}\nv_add_f32 v{d}, 1.0, v{d}\nv_rcp_f32 v{d}, v{d}')

def role_mod(k, cfg):
    k.label('L_mod'); k.reset()
    sM, sLW, sT = 34, 35, 36
    vL16, vIDX, vL0, vSEL, vK0, vK1, vL8 = 1, 2, 3, 4, 5, 6, 7
    lane, c, g, t0, t1, t2 = 15, 14, 13, 12, 11, 10
    make_srds(k, [(S_A, 'wr'), (S_B, 'gw'), (S_D, 'x')])
    lane_consts(k, lane, c, g)
    k.I(f'''
    s_sub_u32 s{sM}, s{sPOOL}, 5
    s_mul_i32 s{sM}, s{sM}, 12
    s_add_u32 s{sM}, s{sM}, s{sSLOT}
    s_sub_u32 s{sM}, s{sM}, 18
    v_lshlrev_b32 v{vL16}, 4, v{lane}
    v_lshlrev_b32 v{vL8}, 3, v{lane}
    ''')
    sparse_idx(k, vIDX, lane, t0, t1)
    lane0_off(k, vL0, lane)
    k.I(f's_cmp_ge_u32 s{sM}, 32\ns_cbranch_scc1 L_mod_w')
    XF, RF, GF = 16, 88, 160
    k.I(f'''
    v_mul_u32_u24 v{t0}, 1152, v{c}
    v_lshl_add_u32 v{t0}, v{g}, 4, v{t0}
    v_lshlrev_b32 v{t1}, 4, v{g}
    s_lshl_b32 s{sT}, s{sM}, 2
    s_add_u32 s{sT}, s{sT}, s{sW}
    s_mul_i32 s33, s{sT}, {16*1152}
    ''')
    for ks in range(18):
        k.I(f'buffer_load_dwordx4 {vr(XF+4*ks,4)}, v{t0}, {srd(S_D)}, s33 offen offset:{ks*64}')
        k.I(f'buffer_load_dwordx4 {vr(RF+4*ks,4)}, v{t1}, {srd(S_A)}, 0 offen offset:{ks*64}')
        k.I(f'buffer_load_dwordx4 {vr(GF+4*ks,4)}, v{t1}, {srd(S_B)}, 0 offen offset:{ks*64}')
    ONE, DR, DG = 232, 236, 240
    for r in range(4): k.I(f'v_mov_b32 v{ONE+r}, 0x3f803f80')
    for ks in range(18):
        k.I(f'v_mfma_f32_16x16x32_bf16 {vr(DR,4)}, {vr(RF+4*ks,4)}, {vr(XF+4*ks,4)}, {vr(DR,4) if ks else 0}')
        for j in range(4):
            x, gw = XF+4*ks+j, GF+4*ks+j
            k.I(f'''
            v_lshlrev_b32 v244, 16, v{x}
            v_lshlrev_b32 v245, 16, v{gw}
            v_and_b32 v246, 0xffff0000, v{x}
            v_and_b32 v247, 0xffff0000, v{gw}
            v_mul_f32 v244, v244, v245
            v_mul_f32 v246, v246, v247
            v_cvt_pk_bf16_f32 v{gw}, v244, v246
            ''')
        k.I(f'v_mfma_f32_16x16x32_bf16 {vr(DG,4)}, {vr(ONE,4)}, {vr(GF+4*ks,4)}, {vr(DG,4) if ks else 0}')
    rnd_bf16(k, [(DG, DR)], 244)
    sigmoid(k, 245, DG)
    rnd_bf16(k, [(245, 246)], 244)
    k.I(f'''
    v_ashrrev_i32 v246, 31, v{DR}
    v_or_b32 v246, 0x80000000, v246
    v_xor_b32 v246, v246, v{DR}
    v_and_b32 v246, 0xffff0000, v246
    s_lshl_b32 s{sT}, s{sT}, 4
    v_add_u32 v247, s{sT}, v{c}
    v_sub_u32 v248, 0xffff, v247
    v_or_b32 v246, v246, v248
    v_lshlrev_b32 v247, 2, v247
    v_lshl_add_u32 v247, v{g}, 28, v247
    s_mov_b32 s{sT}, {WS_G:#x}
    buffer_store_dword v245, v247, {ws}, s{sT} offen sc1
    s_mov_b32 s{sT}, {WS_R:#x}
    buffer_store_dword v246, v247, {ws}, s{sT} offen sc1
    ''')
    signal(k, srd(S_DBG), 0, D_RS, 244, vL0)
    k.label('L_mod_w'); k.reset()
    spin_dbg(k, 'L_mod_rs', D_RS, 's_cmp_ge_u32 s33, 32')
    KY = 16
    k.I(f's_mov_b32 s{sT}, {WS_R:#x}\ns_mov_b32 s33, {WS_R + 4096:#x}')
    for i in range(8):
        k.I(f'buffer_load_dwordx4 {vr(KY+4*i,4)}, v{vL16}, {ws}, s{sT if i < 4 else 33} offen offset:{(i%4)*1024} sc1')
    k.I(f'''
    v_lshrrev_b32 v{t0}, 2, v{c}
    v_and_b32 v{t1}, 1, v{c}
    v_lshl_add_u32 v50, v{t0}, 1, v{t1}
    v_lshlrev_b32 v51, 1, v{g}
    v_add_u32 v52, 1, v51
    v_mov_b32 v{vSEL}, 0
    v_mov_b32 v{vK0}, 0
    v_mov_b32 v{vK1}, 0
    v_mov_b32 v53, 0
    s_mov_b32 s37, 0
    ''')
    k.wait(vm=0)
    k.label('L_mod_top'); k.reset()
    k.I(f'v_max3_u32 v48, v{KY}, v{KY+1}, v{KY+2}')
    for i in range(3, 31, 2): k.I(f'v_max3_u32 v48, v48, v{KY+i}, v{KY+i+1}')
    k.I(f'v_max_u32 v48, v48, v{KY+31}')
    for r in (8, 4, 2, 1): k.I(f'v_max_u32_dpp v48, v48, v48 row_ror:{r} row_mask:0xf bank_mask:0xf')
    xlane_g(k, 'v_max_u32', 48, 49)
    for i in range(32): k.I(f'v_cmp_ne_u32 vcc, v48, v{KY+i}\nv_cndmask_b32 v{KY+i}, 0, v{KY+i}, vcc')
    for dst, sel in ((vSEL, 50), (vK0, 51), (vK1, 52), (53, lane)):
        k.I(f'v_cmp_eq_u32 vcc, s37, v{sel}\nv_cndmask_b32 v{dst}, v{dst}, v48, vcc')
    k.I('s_add_u32 s37, s37, 1\ns_cmp_lt_u32 s37, 8\ns_cbranch_scc1 L_mod_top')
    k.I(f'''
    v_and_b32 v53, 0xffff, v53
    v_sub_u32 v53, 0xffff, v53
    v_lshrrev_b32 v{t0}, 3, v{lane}
    v_min_u32 v{t0}, 1, v{t0}
    v_lshlrev_b32 v{t0}, 30, v{t0}
    v_lshl_add_u32 v{t0}, v{lane}, 2, v{t0}
    s_mov_b32 s{sT}, {WS_SEL:#x}
    buffer_store_dword v53, v{t0}, {ws}, s{sT} offen sc1
    v_and_b32 v{vSEL}, 0xffff, v{vSEL}
    v_sub_u32 v{vSEL}, 0xffff, v{vSEL}
    v_mul_u32_u24 v{t0}, 1152, v{vSEL}
    v_lshl_add_u32 v{t0}, v{g}, 5, v{t0}
    v_and_b32 v{t1}, 2, v{lane}
    v_lshl_add_u32 v{t0}, v{t1}, 1, v{t0}
    ''')
    MAf = 16
    for n in range(9):
        for q in range(4): k.I(f'buffer_load_dword v{MAf+4*n+q}, v{t0}, {srd(S_D)}, 0 offen offset:{n*128 + q*8}')
    k.wait(vm=0)
    tl(k, cfg, 0)
    if cfg.get('mod_wait', 1): spin_dbg(k, 'L_mod_ld', D_LOADED, 's_cmp_ge_u32 s33, 32', vt=(72, 73))
    make_srds(k, [(S_A, 'wg'), (S_B, 'wu'), (S_C, 'wd')])
    L = PairLoader(k, lane, c, g, (t0, t1, t2), range(60, 68), 37, sLW, sT, 32768, 65536, 8)
    vDOo, vTOo = 68, 69
    k.I(f's_lshl_b32 s38, s{sM}, 8')
    L.src('nat', 9216, 38)
    k.I(f's_mul_i32 s38, s{sM}, 147456')
    L.src('perm', 1152, 38)
    L.rd_nat()
    k.I(f'''
    v_lshrrev_b32 v{t0}, 1, v{lane}
    v_mul_u32_u24 v{vDOo}, 1152, v{t0}
    v_and_b32 v{t1}, 1, v{lane}
    v_lshl_add_u32 v{vDOo}, v{t1}, 4, v{vDOo}
    s_lshl_b32 s33, s{sW}, 5
    s_add_u32 s38, s38, s33
    s_add_u32 s38, s38, 1024
    v_add_u32 v{vDOo}, s38, v{vDOo}
    v_lshrrev_b32 v{t0}, 3, v{c}
    v_lshlrev_b32 v{t2}, 4, v{t0}
    v_lshl_add_u32 v{t2}, v{g}, 2, v{t2}
    v_bfe_u32 v{t0}, v{c}, 2, 1
    v_add_u32 v{t2}, v{t2}, v{t0}
    s_lshl_b32 s38, s{sW}, 12
    s_add_u32 s38, s38, 16384
    v_lshlrev_b32 v{t0}, 5, v{t2}
    v_and_b32 v{t1}, 3, v{c}
    v_lshl_add_u32 v{vTOo}, v{t1}, 3, v{t0}
    v_add_u32 v{vTOo}, s38, v{vTOo}
    ''')
    L.rd_perm(t2, 3)
    WD = {}; stages = []
    for n in range(9):
        for m, sr in (('G', S_A), ('U', S_B)):
            d = wdest27(len(stages)); WD[m, n] = d
            stages.append(dict(kind='nat', srd=sr, off=n*64*9216, stride=9216, dest=d))
    for pi in range(4):
        for kp in range(2):
            d = wdest27(len(stages)); WD['D', pi, kp] = d
            stages.append(dict(kind='perm', srd=S_C, off=64*kp*1152 + pi*256, stride=1152, ustep=32, dest=d))
    d = wdest27(len(stages)); WD['Do'] = d
    for i in range(4):
        k.I(f's_add_u32 m0, s38, {i*1024}\ns_mov_b32 s{sT}, {32*i*1152}')
        k.I(f'buffer_load_dwordx4 v{vDOo}, {srd(S_C)}, s{sT} offen lds')
    L.start(stages, 0); L.run()
    for u in range(2):
        for hf in range(2):
            for sub in range(2):
                k.I(f'ds_read_b64_tr_b16 {frag_reg(d[u], 4*hf + 2*sub, 2)}, v{vTOo} offset:{(64*u + 32*hf + 2*sub)*32}')
    tl(k, cfg, 1)
    AC = dict(g0=52, g1=56, u0=60, u1=64)
    for a in AC.values(): k.I(f'v_mov_b64 {vr(a,2)}, 0\nv_mov_b64 {vr(a+2,2)}, 0')
    for n in range(9):
        for m in 'GU':
            for u in range(2):
                k.I(f'v_smfmac_f32_16x16x64_bf16 {vr(AC[m.lower()+str(u)],4)}, {vr(MAf+4*n,4)}, {fr(WD[m,n][u])}, v{vIDX}')
    for a in AC.values(): k.I(f'v_pk_add_f32 {vr(a,2)}, {vr(a,2)}, {vr(a+2,2)}')
    rnd_bf16(k, [(a, a+1) for a in AC.values()], 68)
    for u in range(2):
        ga, ua = AC[f'g{u}'], AC[f'u{u}']
        for j in range(2):
            sigmoid(k, 69, ga + j); k.I(f'v_mul_f32 v{ga+j}, v{ga+j}, v69')
        rnd_bf16(k, [(ga, ga+1)], 68)
        k.I(f'v_mul_f32 v{ga}, v{ga}, v{ua}\nv_mul_f32 v{ga+1}, v{ga+1}, v{ua+1}\nv_cvt_pk_bf16_f32 v{70+u}, v{ga}, v{ga+1}')
    k.I(f'''
    v_lshlrev_b32 v{t0}, 5, v{c}
    v_lshl_add_u32 v{t0}, v{g}, 3, v{t0}
    s_lshl_b32 s{sT}, s{sW}, 9
    v_add_u32 v{t0}, s{sT}, v{t0}
    ds_write_b64 v{t0}, v[70:71]
    v_lshlrev_b32 v{t1}, 8, v{g}
    v_lshl_add_u32 v{t1}, v{c}, 3, v{t1}
    ''')
    for a in range(16, 52, 2): k.I(f'v_mov_b64 {vr(a,2)}, 0')
    k.wait(lg=0)
    k.I('s_barrier')
    HA = 72
    for kp in range(2):
        for sub in range(2): k.I(f'ds_read_b64_tr_b16 {vr(HA+4*kp+2*sub,2)}, v{t1} offset:{kp*1024 + sub*128}')
    tiles = []
    for pi in range(4):
        for u in range(2):
            a = 16 + 4*(2*pi + u); tiles.append((a, (8*pi + u)*36*512))
            for kp in range(2): k.I(f'v_smfmac_f32_16x16x64_bf16 {vr(a,4)}, {vr(HA+4*kp,4)}, {fr(WD["D",pi,kp][u])}, v{vIDX}')
    for kp in range(2): k.I(f'v_smfmac_f32_16x16x64_bf16 v[48:51], {vr(HA+4*kp,4)}, {fr(WD["Do"][kp])}, v{vIDX}')
    k.I(f's_lshl_b32 s37, s{sM}, 9\ns_add_u32 s37, s37, {WS_MP:#x}\ns_mul_i32 s38, s{sW}, {2*36*512}\ns_add_u32 s38, s38, s37')
    for a, off in tiles:
        k.I(f'v_pk_add_f32 {vr(a,2)}, {vr(a,2)}, {vr(a+2,2)}\ns_add_u32 s{sT}, s38, {off}')
        k.I(f'buffer_store_dwordx2 {vr(a,2)}, v{vL8}, {ws}, s{sT} offen sc1')
    k.I(f'v_pk_add_f32 v[48:49], v[48:49], v[50:51]\ns_mul_i32 s{sT}, s{sW}, {36*512}\ns_add_u32 s{sT}, s{sT}, s37\ns_add_u32 s{sT}, s{sT}, {32*36*512}')
    k.I(f'buffer_store_dwordx2 v[48:49], v{vL8}, {ws}, s{sT} offen sc1')
    signal(k, srd(S_DBG), 0, D_MOD1, 68, vL0)
    k.I(f's_cmp_lg_u32 s{sW}, 0\ns_cbranch_scc1 L_exit')
    spin_dbg(k, 'L_mod_m1', D_MOD1, 's_cmp_ge_u32 s33, 36')
    k.I(f's_mul_i32 s{sT}, s{sM}, {36*512}\ns_add_u32 s{sT}, s{sT}, {WS_MP:#x}')
    for i in range(36):
        k.I(f'buffer_load_dwordx2 {vr(80+2*i,2)}, v{vL8}, {ws}, s{sT} offen offset:{(i%8)*512} sc1')
        if i % 8 == 7: k.I(f's_add_u32 s{sT}, s{sT}, 4096')
    for kk in (vK0, vK1):
        k.I(f'''
        v_and_b32 v{kk}, 0xffff0000, v{kk}
        v_ashrrev_i32 v16, 31, v{kk}
        v_not_b32 v16, v16
        v_or_b32 v16, 0x80000000, v16
        v_xor_b32 v{kk}, v{kk}, v16
        v_and_b32 v{kk}, 0xffff0000, v{kk}
        ''')
        sigmoid(k, kk, kk)
    rnd_bf16(k, [(vK0, vK1)], 16)
    for i in range(1, 36): k.I(f'v_pk_add_f32 v[80:81], v[80:81], {vr(80+2*i,2)}')
    rnd_bf16(k, [(80, 81)], 16)
    k.I(f'''
    v_mul_f32 v80, v80, v{vK0}
    v_mul_f32 v81, v81, v{vK1}
    v_cvt_pk_bf16_f32 v80, v80, v81
    v_mul_u32_u24 v{t0}, 2304, v{g}
    v_lshl_add_u32 v{t0}, v{c}, 1, v{t0}
    s_lshl_b32 s{sT}, s{sM}, 5
    s_add_u32 s{sT}, s{sT}, {WS_UPD:#x}
    buffer_store_short v80, v{t0}, {ws}, s{sT} offen sc1
    buffer_store_short_d16_hi v80, v{t0}, {ws}, s{sT} offen offset:1152 sc1
    s_waitcnt vmcnt(0)
    v_mov_b32 v16, 1
    buffer_atomic_add v16, v{vL0}, {srd(S_DBG)}, 0 offen offset:{D_MOD2}
    s_branch L_exit
    ''')

def dispatch_roles(k, cfg):
    k.I(f'''
    s_cmp_lt_u32 s{sPOOL}, 5
    s_cbranch_scc1 L_pa
    s_cmp_ge_u32 s{sPOOL}, 8
    s_cbranch_scc1 L_exit
    ''')
    if cfg.get('pref', 1):
        make_srds(k, [(S_A, 'Wo')])
        k.I(f'''
        s_sub_u32 s33, s{sPOOL}, 5
        s_lshl_b32 s33, s33, 5
        s_add_u32 s33, s33, s{sSLOT}
        s_lshl_b32 s33, s33, 2
        s_add_u32 s33, s33, s{sW}
        s_mul_i32 s33, s33, 12288
        s_add_u32 s34, s33, 4096
        v_lshlrev_b32 v1, 7, v0
        buffer_load_dword v250, v1, {srd(S_A)}, s33 offen
        buffer_load_dword v251, v1, {srd(S_A)}, s34 offen
        ''')
    k.I(f'''
    s_cmp_lt_u32 s{sSLOT}, 18
    s_cbranch_scc1 L_o
    s_cmp_lt_u32 s{sSLOT}, 30
    s_cbranch_scc1 L_mod
    s_branch L_init
    ''')
def bodies(k, cfg):
    for f in (role_init, role_pa, role_o, role_mod):
        k.raw('.p2align 6')
        f(k, cfg)
```

```python
import sys
from common import *
import chain, roles

KNAME = 'gated_mix__memory_aug_recurrent_mem_tr__moe_arch_mod__prompt_kernel'
HDR = open('gated_mix__memory_aug_recurrent_mem_tr__moe_arch_mod__prompt.s.ref').read().split('; Override launch')[0]

def dispatch(k, cfg):
    if cfg.get('stamps'): k.raw('  s_memtime s[98:99]')
    k.I('s_cmp_ge_u32 s2, 256')
    k.I('s_cbranch_scc1 L_end')
    if cfg.get('tl'): k.raw('  s_memrealtime s[96:97]\n  s_mov_b32 s98, 0\n  s_mov_b32 s100, 0')
    k.I(f's_load_dwordx16 s[{S_KA}:{S_KA+15}], s[0:1], 0')
    k.I(f's_load_dwordx16 s[{S_KA+16}:{S_KA+31}], s[0:1], 64')
    if cfg.get('cpref', 1):
        k.raw('  s_getpc_b64 s[12:13]')
        k.label('L_pc')
        k.I(f'''
        s_mov_b32 s14, L_code_end-L_pc
        s_mov_b32 s15, 0x20000
        v_lshlrev_b32 v252, 7, v0
        s_mov_b32 s33, 32768
        s_mov_b32 s34, 65536
        buffer_load_dword v253, v252, s[12:15], 0 offen
        buffer_load_dword v254, v252, s[12:15], s33 offen
        buffer_load_dword v255, v252, s[12:15], s34 offen
        ''')
        k.vm = []
    k.wait(lg=0)
    make_srds(k, [(S_WS, 'ws'), (S_DBG, 'dbg')])
    k.I(f'''
    v_lshrrev_b32 v1, 6, v0
    v_and_b32 v0, 63, v0
    v_readfirstlane_b32 s{sW}, v1
    s_getreg_b32 s33, hwreg(HW_REG_XCC_ID)
    s_and_b32 s33, s33, 7
    s_mov_b32 s{sBUD}, {BUDGET}
    v_mov_b32 v3, 0
    ''')
    if cfg.get('force_foreign'):
        k.I('s_lshr_b32 s33, s2, 5')
    k.I(f'''
    s_cmp_lg_u32 s{sW}, 0
    s_cbranch_scc1 L_claimed
    s_mov_b32 s34, 0
    ''')
    k.label('L_claim')
    k.I(f'''
    s_add_u32 s35, s33, s34
    s_and_b32 s35, s35, 7
    s_lshl_b32 s36, s35, 2
    v_lshl_add_u32 v1, v0, 8, s36
    v_mov_b32 v2, 1
    buffer_atomic_add v2, v1, {srd(S_DBG)}, 0 offen sc0
    v_readfirstlane_b32 s36, v2
    s_cmp_lt_u32 s36, 32
    s_cbranch_scc1 L_got
    s_add_u32 s34, s34, 1
    s_cmp_lt_u32 s34, 8
    s_cbranch_scc1 L_claim
    s_mov_b32 s35, 8
    s_mov_b32 s36, 0
    ''')
    k.label('L_got')
    k.I(f'''
    s_lshl_b32 s35, s35, 8
    s_or_b32 s35, s35, s36
    s_lshl_b32 s34, s34, 16
    s_or_b32 s35, s35, s34
    v_mov_b32 v2, s35
    ds_write_b32 v3, v2
    s_waitcnt lgkmcnt(0)
    ''')
    k.label('L_claimed')
    k.reset()
    k.I(f'''
    s_barrier
    ds_read_b32 v2, v3
    v_readfirstlane_b32 s33, v2
    s_and_b32 s{sSLOT}, s33, 0xff
    s_bfe_u32 s{sPOOL}, s33, 0x80008
    s_lshr_b32 s{sFOREIGN}, s33, 16
    s_min_u32 s{sFOREIGN}, s{sFOREIGN}, 1
    s_barrier
    ''')
    if cfg.get('force_foreign'): k.I(f's_mov_b32 s{sFOREIGN}, 1')

def gen(cfg):
    k = K()
    dispatch(k, cfg)
    k.I(f's_cmp_eq_u32 s{sPOOL}, 0')
    k.I('s_cbranch_scc1 L_chain')
    if cfg.get('roles'):
        cfg['roles'](k, cfg)
    k.label('L_exit')
    if cfg.get('tl'):
        k.raw(f'''  s_waitcnt vmcnt(0)
  s_memrealtime s[94:95]
  s_waitcnt lgkmcnt(0)
  s_mov_b64 exec, -1
  v_mov_b32 v0, s96
  v_mov_b32 v1, s94
  v_mov_b32 v2, s98
  v_mov_b32 v3, s100
  s_lshl_b32 s33, s{sPOOL}, 5
  s_add_u32 s33, s33, s{sSLOT}
  s_lshl_b32 s33, s33, 2
  s_add_u32 s33, s33, s{sW}
  s_lshl_b32 s33, s33, 4
  s_add_u32 s33, s33, {WS_STAMP + 0x4000}
  buffer_store_dwordx4 v[0:3], off, s[4:7], s33''')
        if cfg['tl'] == 2:
            k.raw(f'''  s_mov_b64 exec, 1
  v_not_b32 v0, v0
  buffer_atomic_umax v0, off, s[8:11], 0 offset:36
  buffer_atomic_umax v1, off, s[8:11], 0 offset:40
  s_cmp_eq_u32 s{sPOOL}, 0
  s_cbranch_scc0 L_end
  buffer_atomic_umax v2, off, s[8:11], 0 offset:44
  buffer_atomic_umax v3, off, s[8:11], 0 offset:48
  buffer_atomic_umax v1, off, s[8:11], 0 offset:52
  s_memtime s[92:93]
  s_waitcnt lgkmcnt(0)
  s_sub_u32 s92, s92, s90
  s_sub_u32 s94, s94, s100
  v_mov_b32 v4, s92
  v_mov_b32 v5, s94
  buffer_store_dwordx2 v[4:5], off, s[8:11], 0 offset:56''')
    k.label('L_end')
    k.raw('  s_endpgm')
    k.reset()
    k.label('L_chain')
    chain.chain_prologue(k, cfg)
    for md, st in (('f', ''), ('s', 'sc1')):
        for w in range(4):
            k.raw('.p2align 6')
            chain.chain_loop(k, f'L_c{md}{w}', st, cfg, w)
    if cfg.get('bodies'):
        cfg['bodies'](k, cfg)
    k.label('L_code_end')
    k.raw('  s_endpgm')
    head = HDR + f'''; @launch grid=(256,1,1) block=(256,1,1) lds=163840
.amdgcn_target "amdgcn-amd-amdhsa--gfx950"
.text
.globl {KNAME}
.p2align 8
.type {KNAME},@function
{KNAME}:
'''
    tail = f'''.section .rodata,"a"
.p2align 6
.amdhsa_kernel {KNAME}
  .amdhsa_next_free_vgpr 512
  .amdhsa_next_free_sgpr 102
  .amdhsa_accum_offset 256
  .amdhsa_group_segment_fixed_size 0
  .amdhsa_kernarg_size 128
  .amdhsa_user_sgpr_count 2
  .amdhsa_user_sgpr_kernarg_segment_ptr 1
  .amdhsa_system_sgpr_workgroup_id_x 1
.end_amdhsa_kernel
'''
    return head + k.text() + tail, k

DEFAULT = dict(d1=[0,192,288,320], ep=[20,18], hold=0, nhead=4, pll=-1, mg=8, pl=12, pb2=20, ow=0, syr=4, vps=[1]*6+[2,2,1,2]*3, cpref=0, pref=0, o_wait=0, psleep=16, osleep=4, ev=1, shift=2, roles=roles.dispatch_roles, bodies=roles.bodies)
OUT = 'gated_mix__memory_aug_recurrent_mem_tr__moe_arch_mod__prompt.s'
if __name__ == '__main__':
    txt, k = gen(DEFAULT)
    open(OUT, 'w').write(txt)
    print('lines', len(k.out), 'nops', k.nops_inserted)
```
